```python
import torch

def _softmax(x, axis=-1):
    return torch.softmax(x, dim=axis)
def _gelu(x):
    return torch.nn.functional.gelu(x, approximate="tanh")
def _silu(x):
    return torch.nn.functional.silu(x)
def _sigmoid(x):
    return torch.sigmoid(x)
def _layernorm(x, axis=-1, eps=1e-5):
    m = x.mean(dim=axis, keepdim=True)
    v = x.var(dim=axis, keepdim=True, unbiased=False)
    return (x - m) / torch.sqrt(v + eps)
def _scatter_add(tgt, idx, src, axis=0):
    return tgt.clone().index_add_(axis, idx, src)
def _segment_sum(src, seg, n):
    out = torch.zeros((n,) + src.shape[1:], dtype=src.dtype)
    return out.index_add_(0, seg, src)
def _pad(x, pw):
    flat = tuple(v for pair in reversed(pw) for v in pair)
    return torch.nn.functional.pad(x, flat)

kernel_name = 'parallel_sum__ssm_conv_h3__glu_gated_geglu__prompt'

def setup_inputs():

    _w = (lambda a: (lambda t: t.to(torch.bfloat16) if t.is_floating_point() else t)(torch.as_tensor(a)))
    def _A_setup():
        B, S, D = 1, 2048, 640
        ks = 4
        return {
            "q": _w((lambda *s: torch.randn(*s, dtype=torch.bfloat16) * 0.05)(B, S, D)),
            "k": _w((lambda *s: torch.randn(*s, dtype=torch.bfloat16) * 0.2)(B, S, D)),
            "v": _w((lambda *s: torch.randn(*s, dtype=torch.bfloat16) * 0.2)(B, S, D)),
            "shift_k": _w((lambda *s: torch.randn(*s, dtype=torch.bfloat16) * 0.2)(D, ks) * 0.5),
            "ssm_k": _w((lambda *s: torch.randn(*s, dtype=torch.bfloat16) * 0.4)(D, S) * (1.0 / S ** 0.5)),
            "ssm_D": _w((lambda *s: torch.randn(*s, dtype=torch.bfloat16) * 0.2)(D)),
        }
    _A_in = _A_setup()

    def _B_setup():
        B, S, Dm, Df = 1, 2048, 640, 1728
        return {
            "x": _w((lambda *s: torch.randn(*s, dtype=torch.bfloat16) * 0.05)(B, S, Dm)),
            "w_gate": _w((lambda *s: torch.randn(*s, dtype=torch.bfloat16) * 0.4)(Dm, Df) * (Dm ** -0.5)),
            "w_up": _w((lambda *s: torch.randn(*s, dtype=torch.bfloat16) * 0.4)(Dm, Df) * (Dm ** -0.5)),
            "w_down": _w((lambda *s: torch.randn(*s, dtype=torch.bfloat16) * 0.4)(Df, Dm) * (Df ** -0.5)),
        }
    _B_in = _B_setup()

    return {
        "A_q": _A_in["q"],
        "A_k": _A_in["k"],
        "A_v": _A_in["v"],
        "A_shift_k": _A_in["shift_k"],
        "A_ssm_k": _A_in["ssm_k"],
        "A_ssm_D": _A_in["ssm_D"],
        "B_x": _B_in["x"],
        "B_w_gate": _B_in["w_gate"],
        "B_w_up": _B_in["w_up"],
        "B_w_down": _B_in["w_down"],
    }

def reference(A_q, A_k, A_v, A_shift_k, A_ssm_k, A_ssm_D, B_x, B_w_gate, B_w_up, B_w_down):
    def _A_ref(q, k, v, shift_k, ssm_k, ssm_D):
        B, S, D = q.shape
        ks = shift_k.shape[-1]
        k_pad = _pad(k, ((0, 0), (ks - 1, 0), (0, 0)))
        k_shift = torch.zeros_like(k)
        for t in range(ks):
            k_shift = k_shift + k_pad[:, t:t + S, :] * shift_k[:, ks - 1 - t][None, None, :]
        kv = k_shift * v
        L = 2 * S
        kv_pad = _pad(kv, ((0, 0), (0, S), (0, 0)))
        kf_pad = _pad(ssm_k, ((0, 0), (0, S)))
        kv_f = (lambda x, axes=(-2,-1): torch.fft.rfft2(x.float(), dim=axes))(kv_pad[:, None, :, :], axes=(1, 2))
        kf_f = (lambda x, axes=(-2,-1): torch.fft.rfft2(x.float(), dim=axes))(kf_pad[:, None, :], axes=(1, 2))
        kf_f = (lambda x, *d: x.permute(*d))(kf_f, 1, 2, 0)
        y_f = kv_f * kf_f[None, :, :, :]
        y = (lambda x, s, axes=(-2,-1): torch.fft.irfft2(x, s=s, dim=axes).to(torch.bfloat16))(y_f, (1, L), axes=(1, 2))[:, 0, :S, :]
        y = y + kv * ssm_D[None, None, :]
        return q * y

    def _B_ref(x, w_gate, w_up, w_down):
        g = torch.einsum("bsd,df->bsf", x, w_gate)
        u = torch.einsum("bsd,df->bsf", x, w_up)
        h = _gelu(g) * u
        return torch.einsum("bsf,fd->bsd", h, w_down)

    x = A_q
    xn = _layernorm(x, axis=-1)
    return x + _A_ref(xn, A_k, A_v, A_shift_k, A_ssm_k, A_ssm_D) + _B_ref(xn, B_w_gate, B_w_up, B_w_down)
```

```python
import re

REG_RE = re.compile(r"\b([vsa])(\d+)\b|\b([vsa])\[(\d+):(\d+)\]|\b(vcc|exec|m0|scc)\b")

TRANS = ("v_exp_f32", "v_log_f32", "v_rcp_f32", "v_rsq_f32", "v_sqrt_f32", "v_sin_f32", "v_cos_f32")


def regs_of(tok):
    out = set()
    for m in REG_RE.finditer(tok):
        if m.group(1):
            out.add((m.group(1), int(m.group(2))))
        elif m.group(3):
            for i in range(int(m.group(4)), int(m.group(5)) + 1):
                out.add((m.group(3), i))
        else:
            n = m.group(6)
            if n == "vcc":
                out.add(("s", 106)); out.add(("s", 107))
            elif n == "exec":
                out.add(("x", 0))
            elif n == "m0":
                out.add(("m", 0))
    return out


def split_ops(s):
    ops, depth, cur = [], 0, ""
    for ch in s:
        if ch == "[":
            depth += 1
        if ch == "]":
            depth -= 1
        if ch == "," and depth == 0:
            ops.append(cur.strip()); cur = ""
        else:
            cur += ch
    if cur.strip():
        ops.append(cur.strip())
    return ops


class Ins:
    __slots__ = ("text", "mn", "ops", "dst", "src", "cls", "states", "A", "B", "C", "wide", "dpp")

    def __init__(self, text):
        self.text = text
        t = text.split(";")[0].strip()
        parts = t.split(None, 1)
        self.mn = mn = parts[0]
        rest = parts[1] if len(parts) > 1 else ""
        ops = split_ops(rest)
        self.ops = ops
        self.dst, self.src = set(), set()
        self.A = self.B = self.C = set()
        self.states = 1
        self.wide = set()
        self.dpp = ("quad_perm" in rest or "row_" in rest or "wave_" in rest)
        R = [regs_of(o) for o in ops]
        allr = set().union(*R) if R else set()
        if mn.startswith("v_mfma"):
            self.cls = "mfma"
            self.dst = R[0]; self.A = R[1]; self.B = R[2]; self.C = R[3]
            self.src = R[1] | R[2] | R[3]
        elif mn.startswith("v_"):
            self.cls = "trans" if mn.replace("_e32", "").replace("_e64", "") in TRANS else "valu"
            self.dst = set(R[0])
            self.src = set().union(*R[1:]) if len(R) > 1 else set()
            if mn.startswith(("v_fmac", "v_mac", "v_pk_fmac", "v_dot2c")):
                self.src |= R[0]
            if mn.startswith(("v_add_co", "v_sub_co", "v_addc_co", "v_subb_co", "v_subrev_co")):
                self.dst |= R[1]
                self.src = set().union(*R[2:])
            if mn.startswith("v_permlane") and "swap" in mn:
                self.dst = R[0] | R[1]; self.src = R[0] | R[1]
            if mn.startswith("v_swap"):
                self.dst = R[0] | R[1]; self.src = R[0] | R[1]
            if mn.startswith("v_cmpx"):
                self.dst |= {("x", 0)}
            if mn.startswith("v_writelane"):
                self.src |= R[0]
        elif mn.startswith(("buffer_load", "global_load")):
            self.cls = "vmem"
            if re.search(r"\blds\b", rest) or "_lds_" in mn:
                self.src = allr | {("m", 0)}
                self.cls = "vmem_lds"
            else:
                self.dst = R[0]; self.src = set().union(*R[1:])
        elif mn.startswith(("buffer_store", "global_store")):
            self.cls = "vmem"
            self.src = allr
            if mn.endswith(("x3", "x4")):
                self.wide = R[0] if mn.startswith("buffer") else R[1]
        elif mn.startswith(("buffer_atomic", "global_atomic")):
            self.cls = "vmem"
            self.src = allr
            if re.search(r"\bsc0\b", rest):
                self.dst = R[0]
        elif mn.startswith(("ds_read", "ds_bpermute", "ds_permute", "ds_swizzle")):
            self.cls = "ds"
            self.dst = R[0]; self.src = set().union(*R[1:])
        elif mn.startswith("ds_"):
            self.cls = "ds"
            self.src = allr
        elif mn.startswith("s_load"):
            self.cls = "smem"
            self.dst = R[0]; self.src = set().union(*R[1:])
        elif mn == "s_nop":
            self.cls = "nop"; self.states = int(ops[0], 0) + 1
        elif mn.startswith("s_"):
            self.cls = "salu"
            if mn.startswith(("s_cmp", "s_waitcnt", "s_barrier", "s_branch", "s_cbranch", "s_endpgm", "s_setprio",
                              "s_sleep", "s_bitcmp")):
                self.src = allr
            else:
                self.dst = set(R[0]) if R else set()
                self.src = set().union(*R[1:]) if len(R) > 1 else set()
                if "saveexec" in mn:
                    self.dst |= {("x", 0)}
                if mn.startswith(("s_addk", "s_mulk")):
                    self.src |= R[0]
        else:
            raise ValueError("unknown instruction: " + text)


def V(r):
    return {x for x in r if x[0] in "va"}


def S(r):
    return {x for x in r if x[0] == "s"}


class Prog:
    def __init__(self, name):
        self.name = name
        self.lines = []
        self.hist = []
        self.vmq = []
        self.lgq = []
        self.nerr = 0

    def raw(self, s):
        self.lines.append(s)

    def c(self, s):
        self.lines.append("    ; " + s)

    def label(self, l):
        self.lines.append(l + ":")

    def err(self, msg, ins):
        self.nerr += 1
        raise RuntimeError(f"[{self.name}] {msg}: {ins.text}\n  recent:\n    " +
                           "\n    ".join(h.text for h in self.hist[-14:]))

    def need(self, ins):
        need = 0
        dist = 0
        for h in reversed(self.hist[-24:]):
            req = 0
            hv, hs = V(h.dst), S(h.dst)
            if h.cls in ("valu", "trans"):
                if ins.cls == "mfma" and hv & ins.src:
                    req = max(req, 2)
                if h.cls == "trans" and ins.cls != "trans" and hv & (ins.src | ins.dst):
                    req = max(req, 1)
                if ins.mn.startswith(("v_readfirstlane", "v_readlane")) and hv & ins.src:
                    req = max(req, 1)
                if ins.mn.startswith("v_permlane") and hv & ins.src:
                    req = max(req, 2)
                if ins.dpp and hv & ins.src:
                    req = max(req, 2)
                if hs:
                    if ins.cls in ("vmem", "vmem_lds") and hs & ins.src:
                        req = max(req, 5)
                    if ins.cls in ("valu", "trans", "mfma") and hs & ins.src:
                        req = max(req, 4 if ins.mn.startswith(("v_readlane", "v_writelane")) else 2)
                if ("x", 0) in h.dst and ins.cls in ("valu", "trans", "mfma"):
                    req = max(req, 5)
                if "sdwa" in h.text or "op_sel" in h.text:
                    if ins.cls in ("valu", "trans", "mfma") and hv & (ins.src | ins.dst):
                        req = max(req, 2 if ins.cls == "mfma" else 1)
            if h.cls == "mfma":
                big = "32x32" in h.mn
                n_rw, n_c, n_war = (12, 10, 7) if big else (8, 6, 3)
                if ins.cls == "mfma":
                    if hv & (ins.A | ins.B):
                        req = max(req, n_rw)
                    if hv & ins.C and ins.C != h.dst:
                        req = max(req, n_c)
                    if hv & ins.dst and ins.dst != h.dst:
                        req = max(req, n_rw)
                    if hv & ins.dst and not (hv & ins.C):
                        req = max(req, n_rw)
                else:
                    if hv & (ins.src | ins.dst):
                        req = max(req, n_rw)
                    if ins.cls in ("valu", "trans") and V(h.C) & ins.dst:
                        req = max(req, n_war)
            if h.cls == "salu" and ("m", 0) in h.dst and ins.cls == "vmem_lds":
                req = max(req, 1)
            if h.wide and h.wide & ins.dst:
                req = max(req, 2)
            if req > dist:
                need = max(need, req - dist)
            dist += h.states
            if dist > 20:
                break
        return need

    def i(self, text, tag=None, auto=True):
        ins = Ins(text)
        touched = ins.src | ins.dst
        for q, nm in ((self.vmq, "vm"), (self.lgq, "lgkm")):
            for t, d in q:
                if d & touched:
                    self.err(f"touches regs of outstanding {nm} op '{t}'", ins)
        n = self.need(ins)
        if n:
            if not auto:
                self.err(f"hazard needs {n} more states", ins)
            self._emit(Ins(f"s_nop {n - 1}"))
        self._emit(ins)
        if ins.cls in ("vmem", "vmem_lds"):
            self.vmq.append((tag, set(ins.dst)))
            assert len(self.vmq) <= 63, "vmcnt overflow"
        elif ins.cls in ("ds", "smem"):
            self.lgq.append((tag, set(ins.dst), ) if True else None)
        return ins

    def _emit(self, ins):
        self.lines.append("    " + ins.text)
        self.hist.append(ins)

    def _cnt(self, q, tag):
        idx = [k for k, (t, _) in enumerate(q) if t == tag]
        if not idx:
            return None
        return len(q) - 1 - max(idx)

    def wait(self, vm=None, lg=None):
        parts = []
        if vm is not None:
            n = 0 if vm == 0 else self._cnt(self.vmq, vm)
            if n is not None and n < len(self.vmq) or (vm == 0):
                n = n or 0
                parts.append(f"vmcnt({n})")
                self.vmq = self.vmq[len(self.vmq) - n:] if n else []
        if lg is not None:
            n = 0 if lg == 0 else self._cnt(self.lgq, lg)
            if n is not None and n < len(self.lgq) or (lg == 0):
                n = n or 0
                if n > 15:
                    n = 15
                parts.append(f"lgkmcnt({n})")
                self.lgq = self.lgq[len(self.lgq) - n:] if n else []
        if parts:
            self._emit(Ins("s_waitcnt " + " ".join(parts)))

    def fence(self, n=20):
        dist = 0
        need = 0
        for h in reversed(self.hist[-24:]):
            req = 0
            if h.cls == "mfma":
                req = 12 if "32x32" in h.mn else 8
            elif h.cls in ("valu", "trans"):
                req = 5 if (S(h.dst) or ("x", 0) in h.dst) else 2
            elif h.wide:
                req = 2
            elif h.cls == "salu" and ("m", 0) in h.dst:
                req = 1
            if req > dist:
                need = max(need, req - dist)
            dist += h.states
            if dist > 20:
                break
        if need:
            self._emit(Ins(f"s_nop {need - 1}"))
        self.hist = []

    def fork_state(self):
        return (list(self.hist), list(self.vmq), list(self.lgq))

    def set_state(self, st):
        self.hist, self.vmq, self.lgq = list(st[0]), list(st[1]), list(st[2])

    def text(self):
        return "\n".join(self.lines) + "\n"


def vr(base, n=1):
    return f"v{base}" if n == 1 else f"v[{base}:{base + n - 1}]"


def sr(base, n=1):
    return f"s{base}" if n == 1 else f"s[{base}:{base + n - 1}]"
```

```python
import struct

S_LEN, D_M, D_F = 2048, 640, 1728

WS_H = 0x000000
WS_WD = 0x700000
WS_UR = 0x940000
WS_YT = 0xC00000
WS_STATS = 0xF00000
WS_CS = 0xF10000
WS_PROF = 0xF80000
WS_SIZE = 0x1000000

X_BYTES = S_LEN * D_M * 2
W_BYTES = D_M * D_F * 2

P_X, P_K, P_V, P_SK, P_H, P_D, P_BX, P_WG, P_WU, P_WD, P_OUT, P_DBG, P_WS = [16 + 2 * i for i in range(13)]


def f32(x):
    return "0x%08x" % struct.unpack("<I", struct.pack("<f", x))[0]


def load_kernargs(p):
    p.i("s_load_dwordx16 s[16:31], s[0:1], 0")
    p.i("s_load_dwordx8 s[32:39], s[0:1], 64")
    p.i("s_load_dwordx2 s[40:41], s[0:1], 96")


def srd(p, base, ptr, nbytes):
    p.i(f"s_mov_b32 s{base}, s{ptr}")
    p.i(f"s_and_b32 s{base + 1}, s{ptr + 1}, 0xffff")
    p.i(f"s_mov_b32 s{base + 2}, {nbytes:#x}")
    p.i(f"s_mov_b32 s{base + 3}, 0x20000")
```

```python
import math
from asmlib import Prog, vr, sr
from common import *

SX, SW, SWS, SDBG, SK_, SV_, SM_ = 44, 48, 52, 56, 60, 64, 68

ACC, WF, XR, CS, STR, CON, POLL = 16, 80, 112, 208, 240, 244, 252
TMP, OUT = 176, 192
NSPARE = 40


def acc(rt, tile):
    return ACC + (rt * 8 + tile) * 4


def xreg(ks, rt):
    return XR + ((ks >> 1) % 6) * 16 + ((ks & 1) * 2 + rt) * 4


def gemm(p, cfg):
    L = cfg.get("L", 5)
    p.c("---- GEMM1 role: s8=rg s9=cg")
    p.i("s_and_b32 s8, s5, 3")
    p.i("s_lshl_b32 s7, s7, 2")
    p.i("s_add_u32 s8, s8, s7")
    p.i("s_lshr_b32 s9, s5, 2")
    p.i("s_mul_i32 s6, s6, 7")
    p.i("s_add_u32 s9, s9, s6")
    p.i("s_lshl_b32 s10, s8, 8")
    p.i("s_lshl_b32 s11, s3, 5")
    p.i("s_add_u32 s10, s10, s11")
    p.i("v_and_b32 v2, 15, v0")
    p.i("v_lshrrev_b32 v3, 4, v0")
    p.i("v_add_u32 v1, s10, v2")
    p.i("v_mul_u32_u24 v4, 0x500, v1")
    p.i("v_lshl_add_u32 v4, v3, 4, v4")
    p.i("v_add_u32 v5, 0x5000, v4")
    p.i(f"v_lshlrev_b32 v14, 3, v1")
    p.i(f"v_add_u32 v14, {WS_STATS:#x}, v14")
    p.i("s_lshr_b32 s11, s3, 1")
    p.i("s_and_b32 s12, s11, 1")
    p.i("s_lshl_b32 s12, s12, 2")
    p.i("v_and_b32 v6, 1, v3")
    p.i("v_lshlrev_b32 v6, 1, v6")
    p.i("v_or_b32 v6, s12, v6")
    p.i("v_and_b32 v7, 7, v0")
    p.i("v_xor_b32 v6, v6, v7")
    p.i("v_lshrrev_b32 v7, 3, v0")
    p.i("v_mul_u32_u24 v7, 0xd80, v7")
    p.i("v_lshl_add_u32 v6, v6, 4, v7")
    p.i("s_mul_i32 s12, s11, 27648")
    p.i("s_lshl_b32 s13, s9, 7")
    p.i("s_add_u32 s12, s12, s13")
    p.i("v_add_u32 v6, s12, v6")
    p.i("s_and_b32 s13, s3, 1")
    p.i("s_lshl_b32 s12, s13, 12")
    p.i("s_lshl_b32 s11, s11, 10")
    p.i("s_add_u32 s12, s12, s11")
    p.i("v_bfe_u32 v7, v0, 2, 2")
    p.i("v_lshl_add_u32 v7, v3, 3, v7")
    p.i("v_lshlrev_b32 v7, 7, v7")
    p.i("v_and_b32 v8, 3, v0")
    p.i("v_lshl_add_u32 v7, v8, 3, v7")
    p.i("v_bfe_u32 v8, v0, 3, 2")
    p.i("v_lshlrev_b32 v8, 5, v8")
    for t in range(4):
        p.i(f"v_xor_b32 v{9 + t}, {t << 5:#x}, v8")
        p.i(f"v_add_u32 v{9 + t}, v{9 + t}, v7")
    p.i("v_lshlrev_b32 v13, 4, v0")
    p.i("s_lshl_b32 s14, s9, 9")
    p.i(f"s_add_u32 s14, s14, {WS_CS:#x}")
    p.i("v_lshl_add_u32 v15, v3, 4, s14")
    p.i("s_lshl_b32 s14, s8, 4")
    p.i("s_lshl_b32 s15, s3, 1")
    p.i("s_add_u32 s14, s14, s15")
    p.i("s_mul_i32 s14, s14, 54")
    p.i("s_lshl_b32 s15, s9, 1")
    p.i("s_add_u32 s14, s14, s15")
    p.i("s_lshl_b32 s14, s14, 10")
    p.i("s_add_u32 s15, s14, 55296")
    p.wait(lg=0)
    srd(p, SX, P_X, X_BYTES)
    p.i("s_cmp_eq_u32 s13, 0")
    p.i(f"s_cselect_b32 s{SW}, s{P_WG}, s{P_WU}")
    p.i(f"s_cselect_b32 s{SW + 1}, s{P_WG + 1}, s{P_WU + 1}")
    p.i(f"s_and_b32 s{SW + 1}, s{SW + 1}, 0xffff")
    p.i(f"s_mov_b32 s{SW + 2}, {W_BYTES:#x}")
    p.i(f"s_mov_b32 s{SW + 3}, 0x20000")

    def ld_w(ks):
        p.i(f"s_add_u32 m0, s12, {ks * 8192:#x}")
        p.i(f"s_mov_b32 s11, {ks * 110592:#x}")
        p.i(f"buffer_load_dwordx4 v6, {sr(SW, 4)}, s11 offen lds", tag=f"W{ks >> 1}")

    def ld_x(ks, rt):
        p.i(f"buffer_load_dwordx4 {vr(xreg(ks, rt), 4)}, v{4 + rt}, {sr(SX, 4)}, 0 offen offset:{64 * ks}",
            tag=f"X{ks >> 1}")

    def pair_loads(P):
        return [lambda: ld_w(2 * P), lambda: ld_w(2 * P + 1),
                lambda: ld_x(2 * P, 0), lambda: ld_x(2 * P + 1, 0),
                lambda: ld_x(2 * P, 1), lambda: ld_x(2 * P + 1, 1)]

    npro = cfg.get("npro", 3)
    for P in range(npro):
        for f in pair_loads(P):
            f()
    srd(p, SWS, P_WS, WS_SIZE)
    srd(p, SDBG, P_DBG, 256)

    TAILK = 12
    frags = [(ks, m, t) for ks in range(TAILK) for m in range(2) for t in range(4)]
    frags += [(ks, m, t) for t in range(4) for ks in range(TAILK, 20) for m in range(2)]
    N = len(frags)
    side = {n: [] for n in range(2 * N + 1)}

    sched = cfg.get("sched", {3: 0, 4: 16, 5: 32, 6: 48, 7: 64, 8: 96, 9: 128})
    for P in range(npro, 10):
        at = sched[P]
        assert P < 6 or at >= (P - 6 + 1) * 32, "x ring slot not yet free"
        for k, f in enumerate(pair_loads(P)):
            side[at + 2 * k + 1].append(f)

    def poll_issue():
        p.i(f"buffer_load_dword v{POLL}, off, {sr(SDBG, 4)}, 0 sc1", tag="poll")

    def poll_check():
        p.wait(vm=0)
        p.i("s_mov_b32 s70, 0x40000")
        p.label("K1_POLL")
        p.i(f"v_readfirstlane_b32 s11, v{POLL}")
        p.i(f"s_cmp_eq_u32 s11, {NSPARE}")
        p.i("s_cbranch_scc1 K1_POLL_OK")
        p.i("s_sub_u32 s70, s70, 1")
        p.i("s_cbranch_scc1 K1_POLL_OK")
        p.i(f"buffer_load_dword v{POLL}, off, {sr(SDBG, 4)}, 0 sc1")
        p.wait(vm=0)
        p.i("s_branch K1_POLL")
        p.label("K1_POLL_OK")
        for rt in range(2):
            p.i(f"buffer_load_dwordx2 {vr(STR + 2 * rt, 2)}, v14, {sr(SWS, 4)}, 0 offen offset:{128 * rt} sc1",
                tag="pay")
        for tile in range(8):
            p.i(f"buffer_load_dwordx4 {vr(CS + 4 * tile, 4)}, v15, {sr(SWS, 4)}, 0 offen offset:{64 * tile} sc1",
                tag="pay")

    side[cfg.get("poll_at", 150)].append(poll_issue)
    side[cfg.get("check_at", 190)].append(poll_check)

    C0 = -2.0 * math.log2(math.e) * math.sqrt(2.0 / math.pi)

    def consts():
        p.wait(vm="pay")
        ops = []
        for rt in range(2):
            m, den = STR + 2 * rt, STR + 2 * rt + 1
            nm, c1, c0, d2 = CON + 4 * rt, CON + 4 * rt + 1, CON + 4 * rt + 2, CON + 4 * rt + 3
            p.i(f"v_rcp_f32 v{c0}, v{den}")
            p.i(f"v_mul_f32 v{d2}, v{den}, v{den}")
            p.i(f"v_sub_f32 v{nm}, 0, v{m}")
            p.i(f"v_mul_f32 v{c1}, v{c0}, v{c0}")
            p.i(f"v_mul_f32 v{c0}, {f32(C0)}, v{c0}")
            p.i(f"v_mul_f32 v{c1}, {f32(0.044715)}, v{c1}")
            p.i(f"v_mul_f32 v{c1}, v{c1}, v{c0}")

    def epilogue_ops(t):
        ops = []
        vals = [(rt, r) for rt in range(2) for r in range(4)]
        G = lambda rt, r: acc(rt, t) + r
        U = lambda rt, r: acc(rt, 4 + t) + r
        A = lambda rt, r: TMP + rt * 4 + r
        K = lambda rt, k: CON + 4 * rt + k
        for rt, r in vals:
            ops.append(f"v_fma_f32 v{G(rt, r)}, v{K(rt, 0)}, v{CS + 4 * t + r}, v{G(rt, r)}")
        for rt, r in vals:
            ops.append(f"v_fma_f32 v{U(rt, r)}, v{K(rt, 0)}, v{CS + 16 + 4 * t + r}, v{U(rt, r)}")
        for rt, r in vals:
            ops.append(f"v_mul_f32 v{A(rt, r)}, v{G(rt, r)}, v{G(rt, r)}")
        for rt, r in vals:
            ops.append(f"v_fma_f32 v{A(rt, r)}, v{A(rt, r)}, v{K(rt, 1)}, v{K(rt, 2)}")
        for rt, r in vals:
            ops.append(f"v_mul_f32 v{A(rt, r)}, v{A(rt, r)}, v{G(rt, r)}")
        for rt, r in vals:
            ops.append(f"v_exp_f32 v{A(rt, r)}, v{A(rt, r)}")
            ops.append(f"v_mul_f32 v{G(rt, r)}, v{G(rt, r)}, v{U(rt, r)}")
        for rt, r in vals:
            ops.append(f"v_fma_f32 v{A(rt, r)}, v{A(rt, r)}, v{K(rt, 3)}, v{K(rt, 3)}")
        for rt, r in vals:
            ops.append(f"v_rcp_f32 v{A(rt, r)}, v{A(rt, r)}")
        for rt, r in vals:
            ops.append(f"v_mul_f32 v{G(rt, r)}, v{G(rt, r)}, v{A(rt, r)}")
        for rt in range(2):
            o = OUT + (t >> 1) * 8 + rt * 4 + 2 * (t & 1)
            ops.append(f"v_cvt_pk_bf16_f32 v{o}, v{G(rt, 0)}, v{G(rt, 1)}")
            ops.append(f"v_cvt_pk_bf16_f32 v{o + 1}, v{G(rt, 2)}, v{G(rt, 3)}")
        if t & 1:
            for rt in range(2):
                o = OUT + (t >> 1) * 8 + rt * 4
                ops.append(f"buffer_store_dwordx4 {vr(o, 4)}, v13, {sr(SWS, 4)}, s{14 + rt} offen "
                           f"offset:{1024 * (t >> 1)} sc1")
        return ops

    tail0 = TAILK * 16
    side[tail0 + 32 + 1].append(consts)
    for t in range(3):
        ops = epilogue_ops(t)
        start = tail0 + 32 * (t + 1) + 2
        span = 29
        for k, o in enumerate(ops):
            side[start + (k * span) // len(ops)].append(lambda o=o: p.i(o))

    cur = [0, 0, 0, 0]
    barriered = set()

    def rd(n):
        ks, m, t = frags[n]
        P = ks >> 1
        if P not in barriered:
            barriered.add(P)
            p.wait(vm=f"W{P}")
            p.i("s_barrier")
        base = 0 if ks < 8 else (8 if ks < TAILK else TAILK)
        if cur[t] != base:
            p.i(f"v_add_u32 v{9 + t}, {(base - cur[t]) * 8192:#x}, v{9 + t}")
            cur[t] = base
        b = WF + (n % 8) * 4
        off = (ks - base) * 8192 + m * 4096
        p.i(f"ds_read_b64_tr_b16 {vr(b, 2)}, v{9 + t} offset:{off}", tag=f"F{n}")
        p.i(f"ds_read_b64_tr_b16 {vr(b + 2, 2)}, v{9 + t} offset:{off + 512}", tag=f"F{n}")

    for n in range(L):
        rd(n)
    seen = set()
    mi = 0
    for n in range(N):
        ks, m, t = frags[n]
        if n + L < N:
            rd(n + L)
        p.wait(vm=f"X{ks >> 1}", lg=f"F{n}")
        b = WF + (n % 8) * 4
        for rt in range(2):
            a = acc(rt, 4 * m + t)
            cin = vr(a, 4) if (rt, m, t) in seen else "0"
            seen.add((rt, m, t))
            p.i(f"v_mfma_f32_16x16x32_bf16 {vr(a, 4)}, {vr(b, 4)}, {vr(xreg(ks, rt), 4)}, {cin}")
            for f in side[mi]:
                f()
            mi += 1
    for o in epilogue_ops(3):
        p.i(o)
    p.i("s_endpgm")


def stats_task(p, data, tmp, voff_reg):
    for d in range(40):
        p.i(f"v_lshlrev_b32 v{tmp + d}, 16, v{data + d}")
        p.i(f"v_and_b32 v{data + d}, 0xffff0000, v{data + d}")
    allv = [tmp + d for d in range(40)] + [data + d for d in range(40)]
    for k in range(4):
        p.i(f"v_add_f32 v{8 + k}, v{allv[k]}, v{allv[4 + k]}")
    for n in range(8, 80):
        p.i(f"v_add_f32 v{8 + (n & 3)}, v{8 + (n & 3)}, v{allv[n]}")

    def reduce8():
        p.i("v_add_f32 v8, v8, v9")
        p.i("v_add_f32 v10, v10, v11")
        p.i("v_add_f32 v8, v8, v10")
        p.i("v_add_f32_dpp v8, v8, v8 quad_perm:[1,0,3,2] row_mask:0xf bank_mask:0xf")
        p.i("v_add_f32_dpp v8, v8, v8 quad_perm:[2,3,0,1] row_mask:0xf bank_mask:0xf")
        p.i("v_add_f32_dpp v8, v8, v8 row_half_mirror row_mask:0xf bank_mask:0xf")
        p.i(f"v_mul_f32 v8, {f32(1.0 / 640)}, v8")

    reduce8()
    p.i("v_mov_b32 v12, v8")
    for n in range(80):
        p.i(f"v_sub_f32 v{allv[n]}, v{allv[n]}, v12")
    for k in range(4):
        p.i(f"v_mul_f32 v{8 + k}, v{allv[k]}, v{allv[k]}")
    for n in range(4, 80):
        p.i(f"v_fmac_f32 v{8 + (n & 3)}, v{allv[n]}, v{allv[n]}")
    reduce8()
    p.i("v_cvt_pk_bf16_f32 v8, v12, v8")
    p.i("v_and_b32 v9, 0xffff0000, v8")
    p.i(f"v_add_f32 v9, {f32(1e-5)}, v9")
    p.i("v_cvt_pk_bf16_f32 v9, v9, v9")
    p.i("v_and_b32 v9, 0xffff0000, v9")
    p.i("v_sqrt_f32 v9, v9")
    p.i("v_lshlrev_b32 v8, 16, v8")
    p.i("v_cvt_pk_bf16_f32 v9, v9, v9")
    p.i("v_and_b32 v9, 0xffff0000, v9")
    p.i(f"buffer_store_dwordx2 v[8:9], v{voff_reg}, {sr(SWS, 4)}, 0 offen sc1")


def spare(p, cfg):
    p.label("K1_SPARE")
    p.hist = []
    p.c("---- spare role: s8 = sp, s9 = gw")
    p.i("s_lshl_b32 s8, s4, 2")
    p.i("s_add_u32 s8, s8, s5")
    p.i("s_sub_u32 s8, s8, 28")
    p.i("s_lshl_b32 s9, s4, 3")
    p.i("s_add_u32 s9, s9, s5")
    p.i("s_sub_u32 s9, s9, 48")
    p.i("s_cmp_eq_u32 s6, 3")
    p.i("s_cselect_b32 s8, s9, s8")
    p.i("s_lshl_b32 s9, s8, 3")
    p.i("s_add_u32 s9, s9, s3")
    p.i("v_lshrrev_b32 v2, 3, v0")
    p.i("v_and_b32 v3, 7, v0")
    p.i("v_lshlrev_b32 v13, 4, v0")
    p.i("s_mul_hi_u32 s10, s8, 0x1999999a")
    p.i("s_mul_i32 s11, s10, 10")
    p.i("s_sub_u32 s11, s8, s11")
    p.i("s_lshl_b32 s10, s10, 9")
    p.i("s_lshl_b32 s12, s3, 6")
    p.i("s_add_u32 s10, s10, s12")
    p.i("v_lshl_add_u32 v4, v2, 3, s10")
    p.i("v_mul_u32_u24 v5, 0x500, v4")
    p.i("v_lshl_add_u32 v5, v3, 4, v5")
    p.i("s_lshl_b32 s12, s11, 7")
    p.i("v_add_u32 v5, s12, v5")
    p.i("v_lshlrev_b32 v14, 15, v3")
    p.i("s_lshl_b32 s12, s11, 18")
    p.i(f"s_add_u32 s12, s12, {WS_UR + 4080:#x}")
    p.i("v_add_u32 v14, s12, v14")
    p.i("v_lshlrev_b32 v4, 1, v4")
    p.i("v_sub_u32 v14, v14, v4")
    p.i("v_lshlrev_b32 v15, 6, v3")
    p.i("s_lshl_b32 s12, s11, 9")
    p.i("v_add_u32 v15, s12, v15")
    p.i("v_mul_u32_u24 v6, 0x500, v2")
    p.i("v_lshl_add_u32 v6, v3, 4, v6")
    p.wait(lg=0)
    srd(p, SX, P_X, X_BYTES)
    srd(p, SWS, P_WS, WS_SIZE)
    srd(p, SDBG, P_DBG, 256)
    srd(p, SK_, P_K, X_BYTES)
    srd(p, SV_, P_V, X_BYTES)
    srd(p, SM_, P_SK, 640 * 8)
    KR, VR_, SKR = 144, 188, 220

    def kv_loads():
        for i in range(11):
            p.i(f"v_add_u32 v7, {((i - 3) * 1280) & 0xffffffff:#x}, v5")
            p.i(f"buffer_load_dwordx4 {vr(KR + 4 * i, 4)}, v7, {sr(SK_, 4)}, 0 offen", tag="kv")
        for i in range(8):
            p.i(f"v_add_u32 v7, {i * 1280:#x}, v5")
            p.i(f"buffer_load_dwordx4 {vr(VR_ + 4 * i, 4)}, v7, {sr(SV_, 4)}, 0 offen", tag="kv")
        for i in range(4):
            p.i(f"buffer_load_dwordx4 {vr(SKR + 4 * i, 4)}, v15, {sr(SM_, 4)}, 0 offen offset:{16 * i}", tag="kv")

    def stats_loads(data, stask, vo, tag):
        p.i(f"s_mul_i32 s12, s{stask}, 10240")
        for t in range(10):
            p.i(f"buffer_load_dwordx4 {vr(data + 4 * t, 4)}, v6, {sr(SX, 4)}, s12 offen offset:{128 * t}", tag=tag)
        p.i(f"s_lshl_b32 s12, s{stask}, 6")
        p.i(f"s_add_u32 s12, s12, {WS_STATS:#x}")
        p.i(f"v_lshl_add_u32 v{vo}, v2, 3, s12")

    def signal():
        p.wait(vm=0)
        p.i("s_barrier")
        p.i("s_cmp_lg_u32 s3, 0")
        p.i(f"s_cbranch_scc1 K1_LATE")
        p.i("v_mov_b32 v8, 1")
        p.i("s_mov_b64 exec, 1")
        p.i(f"buffer_atomic_add v8, off, {sr(SDBG, 4)}, 0")
        p.i("s_mov_b64 exec, -1")
        p.vmq = []
        p.i("s_branch K1_LATE")

    p.i("s_cmp_ge_u32 s8, 27")
    p.i("s_cbranch_scc1 K1_STATS")
    st0 = p.fork_state()
    p.c("colsum path")
    p.i("s_add_u32 s13, s9, 208")
    p.i("s_cmp_ge_u32 s8, 6")
    p.i("s_cbranch_scc1 K1_CS_NOST")
    stats_loads(104, 13, 1, "stA")
    p.label("K1_CS_NOST")
    p.i("s_and_b32 s13, s3, 1")
    p.i("s_cmp_eq_u32 s13, 0")
    p.i(f"s_cselect_b32 s{SW}, s{P_WG}, s{P_WU}")
    p.i(f"s_cselect_b32 s{SW + 1}, s{P_WG + 1}, s{P_WU + 1}")
    p.i(f"s_and_b32 s{SW + 1}, s{SW + 1}, 0xffff")
    p.i(f"s_mov_b32 s{SW + 2}, {W_BYTES:#x}")
    p.i(f"s_mov_b32 s{SW + 3}, 0x20000")
    p.i("v_mul_u32_u24 v7, 0xd80, v2")
    p.i("v_lshl_add_u32 v7, v3, 4, v7")
    p.i("s_lshr_b32 s12, s3, 1")
    p.i(f"s_mul_i32 s12, s12, {160 * 3456}")
    p.i("s_lshl_b32 s13, s8, 7")
    p.i("s_add_u32 s12, s12, s13")
    p.i("v_add_u32 v4, s12, v7")
    for i in range(20):
        p.i(f"s_mov_b32 s12, {i * 8 * 3456:#x}")
        p.i(f"buffer_load_dwordx4 {vr(16 + 4 * i, 4)}, v4, {sr(SW, 4)}, s12 offen", tag=f"cs{i}")
    kv_loads()
    for i in range(20):
        p.wait(vm=f"cs{i}")
        for d in range(4):
            r = 16 + 4 * i + d
            if i == 0:
                p.i(f"v_lshlrev_b32 v{96 + 2 * d}, 16, v{r}")
                p.i(f"v_and_b32 v{97 + 2 * d}, 0xffff0000, v{r}")
            else:
                p.i(f"v_lshlrev_b32 v{8 + (d & 1) * 2}, 16, v{r}")
                p.i(f"v_and_b32 v{9 + (d & 1) * 2}, 0xffff0000, v{r}")
                p.i(f"v_add_f32 v{96 + 2 * d}, v{96 + 2 * d}, v{8 + (d & 1) * 2}")
                p.i(f"v_add_f32 v{97 + 2 * d}, v{97 + 2 * d}, v{9 + (d & 1) * 2}")
    p.i("s_lshl_b32 s12, s3, 11")
    p.i("v_lshl_add_u32 v7, v0, 5, s12")
    p.i("ds_write_b128 v7, v[96:99]")
    p.i("ds_write_b128 v7, v[100:103] offset:16")
    p.wait(lg=0)
    p.i("s_barrier")
    p.i("s_cmp_ge_u32 s3, 2")
    p.i("s_cbranch_scc1 K1_CS_NORED")
    p.i("s_lshl_b32 s12, s3, 11")
    p.i("v_lshl_add_u32 v7, v0, 2, s12")
    for kq in range(4):
        for rl in range(8):
            p.i(f"ds_read_b32 v{16 + kq * 8 + rl}, v7 offset:{kq * 4096 + rl * 256}", tag="red")
    p.wait(lg=0)
    for n in range(16):
        p.i(f"v_add_f32 v{16 + n}, v{16 + n}, v{32 + n}")
    for n in range(8):
        p.i(f"v_add_f32 v{16 + n}, v{16 + n}, v{24 + n}")
    for n in range(4):
        p.i(f"v_add_f32 v{16 + n}, v{16 + n}, v{20 + n}")
    p.i("v_add_f32 v16, v16, v18")
    p.i("v_add_f32 v17, v17, v19")
    p.i("v_add_f32 v16, v16, v17")
    p.i("s_lshl_b32 s12, s8, 9")
    p.i("s_lshl_b32 s13, s3, 8")
    p.i("s_add_u32 s12, s12, s13")
    p.i(f"s_add_u32 s12, s12, {WS_CS:#x}")
    p.i("v_lshlrev_b32 v7, 2, v0")
    p.i(f"buffer_store_dword v16, v7, {sr(SWS, 4)}, s12 offen sc1")
    p.label("K1_CS_NORED")
    p.fence()
    p.i("s_cmp_ge_u32 s8, 6")
    p.i("s_cbranch_scc1 K1_CS_NOST2")
    stats_task(p, 104, 16, 1)
    p.label("K1_CS_NOST2")
    p.fence()
    signal()
    p.label("K1_STATS")
    p.set_state(st0)
    p.c("stats path")
    p.i("s_sub_u32 s13, s9, 216")
    stats_loads(16, 13, 1, "stA")
    p.i("s_add_u32 s13, s13, 104")
    stats_loads(56, 13, 4, "stB")
    kv_loads()
    p.wait(vm="stA")
    stats_task(p, 16, 96, 1)
    p.wait(vm="stB")
    stats_task(p, 56, 96, 4)
    signal()
    p.label("K1_LATE")
    p.hist = []
    p.vmq, p.lgq = [], []
    p.c("late work: Wd re-layout loads first")
    srd(p, SM_, P_WD, W_BYTES)
    p.i("s_lshl_b32 s14, s3, 13")
    p.i("s_add_u32 s14, s14, 16384")

    def wd_unit_loads(i):
        ss, sc = 72 + 2 * i, 73 + 2 * i
        p.i(f"s_mul_hi_u32 s{ss}, s13, 0x1999999a")
        p.i(f"s_mul_i32 s12, s{ss}, 10")
        p.i(f"s_sub_u32 s{sc}, s13, s12")
        p.i(f"s_mul_i32 s12, s{ss}, {32 * 1280}")
        p.i(f"s_lshl_b32 s15, s{sc}, 7")
        p.i("s_add_u32 s12, s12, s15")
        for n in range(4):
            p.i(f"s_add_u32 m0, s14, {i * 4096 + n * 1024}")
            p.i(f"s_add_u32 s15, s12, {n * 8 * 1280}")
            p.i(f"buffer_load_dwordx4 v6, {sr(SM_, 4)}, s15 offen lds", tag=f"wd{i}")

    p.i("s_add_u32 s13, s9, 320")
    p.i("s_cmp_ge_u32 s13, 540")
    p.i("s_cbranch_scc1 K1_WD_NO1")
    wd_unit_loads(1)
    p.label("K1_WD_NO1")
    p.i("s_mov_b32 s13, s9")
    wd_unit_loads(0)
    p.i("v_mov_b32 v8, -1")
    p.i("v_mov_b32 v9, -1")
    p.i("v_mov_b32 v10, -1")
    p.i("v_mov_b32 v11, -1")
    p.i("s_lshl_b32 s12, s9, 13")
    p.i(f"s_add_u32 s12, s12, {WS_YT:#x}")
    p.i("s_add_u32 s13, s12, 4096")
    for n in range(8):
        p.i(f"buffer_store_dwordx4 v[8:11], v13, {sr(SWS, 4)}, s{12 + (n >> 2)} offen offset:{(n & 3) * 1024} sc1")
    p.c("kv -> UR")
    for e in range(8):
        d, hi = e >> 1, e & 1
        kt, vt, st_ = 16, 28, 36
        ob = 40 + (e & 1) * 4
        rs = 48

        def unp(dst, src):
            if hi:
                p.i(f"v_and_b32 v{dst}, 0xffff0000, v{src}")
            else:
                p.i(f"v_lshlrev_b32 v{dst}, 16, v{src}")
        p.i(f"v_lshlrev_b32 v{st_}, 16, v{SKR + 2 * e}")
        p.i(f"v_and_b32 v{st_ + 1}, 0xffff0000, v{SKR + 2 * e}")
        p.i(f"v_lshlrev_b32 v{st_ + 2}, 16, v{SKR + 2 * e + 1}")
        p.i(f"v_and_b32 v{st_ + 3}, 0xffff0000, v{SKR + 2 * e + 1}")
        for i in range(11):
            unp(kt + i, KR + 4 * i + d)
        for i in range(8):
            unp(vt + i, VR_ + 4 * i + d)
        for i in range(8):
            p.i(f"v_mul_f32 v{rs + i}, v{kt + i}, v{st_ + 3}")
        for j in (2, 1, 0):
            for i in range(8):
                p.i(f"v_fmac_f32 v{rs + i}, v{kt + i + 3 - j}, v{st_ + j}")
        for i in range(8):
            p.i(f"v_mul_f32 v{rs + i}, v{rs + i}, v{vt + i}")
        for k in range(4):
            p.i(f"v_cvt_pk_bf16_f32 v{ob + k}, v{rs + 7 - 2 * k}, v{rs + 6 - 2 * k}")
        p.i(f"s_mov_b32 s12, {e * 4096}")
        p.i(f"buffer_store_dwordx4 {vr(ob, 4)}, v14, {sr(SWS, 4)}, s12 offen sc1")
    p.c("Wd frags")
    p.i("v_lshrrev_b32 v2, 2, v0")
    p.i("v_lshlrev_b32 v2, 7, v2")
    p.i("v_and_b32 v3, 3, v0")
    p.i("v_lshl_add_u32 v2, v3, 3, v2")
    p.i("v_add_u32 v2, s14, v2")
    p.wait(vm="wd0")

    def wd_unit_out(i):
        ss, sc = 72 + 2 * i, 73 + 2 * i
        for t in range(4):
            for h in range(2):
                p.i(f"ds_read_b64_tr_b16 {vr(64 + 4 * t + 2 * h, 2)}, v2 offset:{i * 4096 + h * 2048 + 32 * t}",
                    tag=f"t{t}")
        p.i(f"s_mul_i32 s12, s{sc}, {4 * 54}")
        p.i(f"s_add_u32 s12, s12, s{ss}")
        p.i("s_lshl_b32 s12, s12, 10")
        p.i(f"s_add_u32 s12, s12, {WS_WD:#x}")
        for t in range(4):
            p.wait(lg=f"t{t}")
            p.i(f"buffer_store_dwordx4 {vr(64 + 4 * t, 4)}, v13, {sr(SWS, 4)}, s12 offen sc1")
            if t < 3:
                p.i(f"s_add_u32 s12, s12, {54 * 1024}")

    wd_unit_out(0)
    p.i("s_add_u32 s13, s9, 320")
    p.i("s_cmp_ge_u32 s13, 540")
    p.i("s_cbranch_scc1 K1_END")
    p.i("s_nop 1")
    wd_unit_out(1)
    p.label("K1_END")
    p.i("s_endpgm")


def gen_k1(cfg):
    p = Prog("k1")
    p.label("k1_kernel")
    p.i("s_cmp_ge_u32 s2, 256")
    p.i("s_cbranch_scc1 K1_END")
    load_kernargs(p)
    p.i("v_lshrrev_b32 v1, 6, v0")
    p.i("v_and_b32 v0, 63, v0")
    p.i("v_readfirstlane_b32 s3, v1")
    p.i("s_and_b32 s4, s2, 7")
    p.i("s_lshr_b32 s5, s2, 3")
    p.i("s_lshr_b32 s6, s4, 1")
    p.i("s_and_b32 s7, s4, 1")
    p.i("s_cmp_eq_u32 s6, 3")
    p.i("s_cselect_b32 s8, 24, 28")
    p.i("s_cmp_ge_u32 s5, s8")
    p.i("s_cbranch_scc1 K1_SPARE")
    st = p.fork_state()
    gemm(p, cfg)
    p.set_state(st)
    spare(p, cfg)
    return p
```

```python
from asmlib import Prog, vr, sr
from common import *

SWS, SX, SH, SOUT = 44, 48, 52, 56

CPY = 4160
URO = 4 * CPY
SLOT = URO + 4608
XB = 3 * SLOT
RED = XB + 4 * 3072
PB = RED + 60 * 1024
LDS2 = PB + 20 * 1024

NSTEP = 14


def gemm2(p, cfg):
    NST = cfg.get("nst", 4)
    ACC, STG = 16, 96

    def acc(r, ct):
        return ACC + (r * 5 + ct) * 4

    def hreg(k, r):
        return STG + (k % NST) * 36 + 4 * r

    def wreg(k, ct):
        return STG + (k % NST) * 36 + 16 + 4 * ct

    p.c("---- GEMM2 role (s3 = g)")
    p.i("s_mul_i32 s8, s3, 14")
    p.i("s_sub_u32 s9, s3, 1")
    p.i("s_max_i32 s9, s9, 0")
    p.i("s_sub_u32 s8, s8, s9")
    p.i("v_lshlrev_b32 v13, 4, v0")
    for r in range(4):
        p.i(f"s_add_u32 s9, s3, {r}")
        p.i("s_and_b32 s9, s9, 3")
        p.i("s_lshl_b32 s10, s6, 2")
        p.i("s_add_u32 s10, s10, s9")
        p.i("s_mul_i32 s10, s10, 54")
        p.i("s_add_u32 s10, s10, s8")
        p.i("s_lshl_b32 s10, s10, 10")
        p.i(f"v_add_u32 v{4 + r}, s10, v13")
        if r:
            p.i("s_mul_i32 s9, s9, 15360")
            p.i(f"s_add_u32 s9, s9, {RED + (r - 1) * 5120}")
            p.i(f"v_add_u32 v{r}, s9, v13")
    p.i("s_mul_i32 s9, s7, 270")
    p.i("s_add_u32 s9, s9, s8")
    p.i("s_lshl_b32 s9, s9, 10")
    p.i(f"s_add_u32 s9, s9, {WS_WD:#x}")
    p.i("v_add_u32 v8, s9, v13")
    for ct in range(1, 5):
        p.i(f"v_add_u32 v{8 + ct}, {ct * 54 * 1024:#x}, v8")
    for k in range(1, 4):
        p.i(f"s_mov_b32 s{72 + k}, {k * 4096}")
    p.wait(lg=0)
    srd(p, SWS, P_WS, WS_SIZE)

    def so(k):
        return "0" if k < 4 else f"s{72 + (k >> 2)}"

    def ld_h(k, r):
        p.i(f"buffer_load_dwordx4 {vr(hreg(k, r), 4)}, v{4 + r}, {sr(SWS, 4)}, {so(k)} offen offset:{(k & 3) * 1024}",
            tag=f"H{k}_{r}")

    def ld_w(k, ct):
        p.i(f"buffer_load_dwordx4 {vr(wreg(k, ct), 4)}, v{8 + ct}, {sr(SWS, 4)}, {so(k)} offen offset:{(k & 3) * 1024}",
            tag=f"W{k}_{ct}")

    def loads(k):
        for ct in range(4):
            ld_w(k, ct)
        for r in range(4):
            ld_h(k, r)
        ld_w(k, 4)

    p.i("s_cmp_ge_u32 s3, 2")
    p.i("s_cbranch_scc1 K2_G_SK0")
    loads(0)
    p.label("K2_G_SK0")
    for k in range(1, NST):
        loads(k)
    p.i("s_cmp_lt_u32 s3, 2")
    p.i("s_cbranch_scc1 K2_G_SK1")
    st = p.fork_state()
    p.vmq = []
    loads(NST)
    p.set_state(st)
    p.label("K2_G_SK1")
    for n in range(80):
        p.i(f"v_mov_b32 v{ACC + n}, 0")
    srd(p, SOUT, P_OUT, X_BYTES)
    p.i("s_mul_i32 s9, s3, 15360")
    p.i(f"s_add_u32 s9, s9, {RED}")
    p.i("v_add_u32 v14, s9, v13")
    p.i("v_lshrrev_b32 v240, 4, v0")
    p.i("v_and_b32 v241, 15, v0")
    p.i("v_lshlrev_b32 v15, 10, v240")
    p.i("v_lshl_add_u32 v15, v241, 4, v15")
    p.i("s_lshl_b32 s9, s3, 8")
    p.i(f"s_add_u32 s9, s9, {PB}")
    p.i("v_add_u32 v15, s9, v15")
    p.i("s_lshl_b32 s9, s6, 6")
    p.i("s_lshl_b32 s10, s3, 4")
    p.i("s_add_u32 s9, s9, s10")
    p.i("v_add_u32 v241, s9, v241")
    p.i("v_mul_u32_u24 v241, 0x500, v241")
    p.i("v_lshl_add_u32 v241, v240, 3, v241")
    p.i("s_mul_i32 s9, s7, 160")
    p.i("v_add_u32 v241, s9, v241")
    p.i("s_barrier")
    p.i("s_cmp_ge_u32 s3, 2")
    p.i("s_cbranch_scc1 K2_G_BLK1")

    def mf(k, r, ct):
        p.wait(vm=f"W{k}_{ct}")
        p.wait(vm=f"H{k}_{r}")
        a = acc(r, ct)
        p.i(f"v_mfma_f32_16x16x32_bf16 {vr(a, 4)}, {vr(wreg(k, ct), 4)}, {vr(hreg(k, r), 4)}, {vr(a, 4)}")

    for k in range(NSTEP - 1):
        if k == 1:
            p.label("K2_G_BLK1")
            p.hist = []
        nxt = k + NST < NSTEP
        for ct in range(5):
            for r in range(4):
                mf(k, r, ct)
                if ct == 4 and nxt:
                    ld_h(k + NST, r)
            if nxt:
                ld_w(k + NST, ct)
    k = NSTEP - 1
    order = [(r, ct) for r in (1, 2, 3, 0) for ct in range(5)]
    for n, (r, ct) in enumerate(order):
        mf(k, r, ct)
        if n >= 2 and n - 2 < 15:
            r2, c2 = order[n - 2]
            p.i(f"ds_write_b128 v{r2}, {vr(acc(r2, c2), 4)} offset:{c2 * 1024}")
    p.wait(lg=0)
    p.i("s_barrier")
    T = STG

    def rdp(ct):
        for s in range(3):
            p.i(f"ds_read_b128 {vr(T + ct * 16 + s * 4, 4)}, v14 offset:{(s * 5 + ct) * 1024}", tag=f"R{ct}")
        p.i(f"ds_read_b128 {vr(T + ct * 16 + 12, 4)}, v15 offset:{ct * 4096}", tag=f"R{ct}")

    for ct in range(3):
        rdp(ct)
    for ct in range(5):
        p.wait(lg=f"R{ct}")
        if ct + 3 < 5:
            rdp(ct + 3)
        b = T + ct * 16
        a = acc(0, ct)
        for h in (0, 2):
            p.i(f"v_pk_add_f32 {vr(b + h, 2)}, {vr(b + h, 2)}, {vr(b + 4 + h, 2)}")
            p.i(f"v_pk_add_f32 {vr(b + 8 + h, 2)}, {vr(b + 8 + h, 2)}, {vr(b + 12 + h, 2)}")
        for h in (0, 2):
            p.i(f"v_pk_add_f32 {vr(a + h, 2)}, {vr(a + h, 2)}, {vr(b + h, 2)}")
        for h in (0, 2):
            p.i(f"v_pk_add_f32 {vr(a + h, 2)}, {vr(a + h, 2)}, {vr(b + 8 + h, 2)}")
        p.i(f"v_cvt_pk_bf16_f32 v{b}, v{a}, v{a + 1}")
        p.i(f"v_cvt_pk_bf16_f32 v{b + 1}, v{a + 2}, v{a + 3}")
        p.i(f"buffer_store_dwordx2 {vr(b, 2)}, v241, {sr(SOUT, 4)}, 0 offen offset:{32 * ct} sc1")
    p.i("s_endpgm")


VA_M, VA_C, VG_M, VG_C, VKV_M, VKV_C, VYT = 1, 2, 3, 4, 5, 6, 7
CACC = 16
KVT = 40
POOL0 = 56


def conv_main(p, cfg, accs, name):
    LA = cfg.get("cla", 8)
    areg = {a: CACC + 4 * k for k, a in enumerate(accs)}
    mfs = []
    for rc in range(8):
        for which in ("M", "C"):
            ns = [n for w_, n in accs if w_ == which]
            if not ns:
                continue
            if rc == 0:
                seq = [(n, I) for n in sorted(ns, reverse=True) for I in range(n + 1)]
            else:
                seq = [(n, I) for I in range(8) for n in sorted(ns, reverse=True) if n >= I]
            for n, I in seq:
                mfs.append(((which, n), ("A", which, 8 * I + rc), ("G", which, 8 * (n - I) + 7 - rc)))
    first, last, lastacc, firstacc = {}, {}, {}, {}
    for m, (a, fa, fb) in enumerate(mfs):
        for f in (fa, fb):
            first.setdefault(f, m)
            last[f] = m
        lastacc[a] = m
        firstacc.setdefault(a, m)
    order = sorted(first, key=lambda f: (first[f], f[0] != "A"))
    free = list(range(POOL0, 248, 4))
    slot = {}
    ptr = [0]

    def rd(f):
        b = free.pop(0)
        slot[f] = b
        kind, which, idx = f
        if kind == "A":
            v = VA_M if which == "M" else VA_C
            p.i(f"ds_read_b64 {vr(b, 2)}, v{v} offset:{64 * idx}", tag=str(f))
            p.i(f"ds_read_b64 {vr(b + 2, 2)}, v{v} offset:{64 * idx + 8}", tag=str(f))
        else:
            v = VG_M if which == "M" else VG_C
            p.i(f"ds_read_b128 {vr(b, 4)}, v{v} offset:{64 * (63 - idx)}", tag=str(f))

    def issue(m, maxn):
        n = 0
        while ptr[0] < len(order) and free and n < maxn and len(p.lgq) <= 12:
            f = order[ptr[0]]
            if first[f] > m + LA:
                break
            rd(f)
            ptr[0] += 1
            n += 2 if f[0] == "A" else 1

    aorder = sorted(accs, key=lambda a: firstacc[a])
    for k, a in enumerate(aorder):
        which, n = a
        p.i(f"ds_read_b64 {vr(KVT + 2 * k, 2)}, v{VKV_M if which == 'M' else VKV_C} offset:{512 * (7 - n)}",
            tag=f"kv{k}")

    def init_ops(k):
        a = aorder[k]
        sd = "s63" if a[0] == "M" else "s62"
        r = areg[a]
        d0, d1 = KVT + 2 * k, KVT + 2 * k + 1
        return [f"v_and_b32 v{r}, 0xffff0000, v{d1}", f"v_lshlrev_b32 v{r + 1}, 16, v{d1}",
                f"v_and_b32 v{r + 2}, 0xffff0000, v{d0}", f"v_lshlrev_b32 v{r + 3}, 16, v{d0}",
                f"v_mul_f32 v{r}, {sd}, v{r}", f"v_mul_f32 v{r + 1}, {sd}, v{r + 1}",
                f"v_mul_f32 v{r + 2}, {sd}, v{r + 2}", f"v_mul_f32 v{r + 3}, {sd}, v{r + 3}"]

    issue(-LA + 3, 8)
    p.wait(lg=f"kv{len(aorder) - 1}")
    for o in init_ops(0):
        p.i(o)
    pend = []
    for k in range(1, len(aorder)):
        pend += [(firstacc[aorder[k]], o) for o in init_ops(k)]
    side = {}

    def epi(a):
        which, n = a
        r = areg[a]
        p.wait(vm="st")
        o = KVT + 2 * aorder.index(a)
        p.i(f"v_cvt_pk_bf16_f32 v{o}, v{r}, v{r + 1}")
        p.i(f"v_cvt_pk_bf16_f32 v{o + 1}, v{r + 2}, v{r + 3}")
        p.i(f"v_pk_min_u16 v{o}, v{o}, s66")
        p.i(f"v_pk_min_u16 v{o + 1}, v{o + 1}, s66")
        p.i(f"buffer_store_dwordx2 {vr(o, 2)}, v{VYT}, {sr(SWS, 4)}, {'s64' if which == 'M' else 's65'} offen "
            f"offset:{512 * n} sc1")

    N = len(mfs)
    tail = []
    for a in accs:
        if lastacc[a] + 2 < N:
            side.setdefault(lastacc[a] + 2, []).append(a)
        else:
            tail.append(a)
    for m, (a, fa, fb) in enumerate(mfs):
        while fa not in slot or fb not in slot:
            rd(order[ptr[0]])
            ptr[0] += 1
        while pend and pend[0][0] <= m:
            p.i(pend.pop(0)[1])
        p.wait(lg=str(fa))
        p.wait(lg=str(fb))
        r = areg[a]
        p.i(f"v_mfma_f32_16x16x32_bf16 {vr(r, 4)}, {vr(slot[fa], 4)}, {vr(slot[fb], 4)}, {vr(r, 4)}")
        for f in (fa, fb):
            if last[f] == m:
                free.append(slot[f])
        issue(m, 4)
        for _ in range(4):
            if pend:
                p.i(pend.pop(0)[1])
        for a2 in side.get(m, []):
            epi(a2)
    for a in sorted(tail, key=lambda a: lastacc[a]):
        epi(a)


def conv(p, cfg):
    p.label("K2_CONV")
    p.hist = []
    p.c("---- conv role")
    if cfg.get("prio", 1):
        p.i(f"s_setprio {cfg.get('prio', 1)}")
    p.i("s_sub_u32 s8, s3, 4")
    p.i("s_lshr_b32 s9, s6, 1")
    p.i("s_mul_i32 s9, s9, 5")
    p.i("s_mul_i32 s10, s7, 80")
    p.i("s_add_u32 s9, s9, s10")
    p.i("s_add_u32 s11, s9, 2")
    p.i("s_and_b32 s12, s6, 1")
    p.i("s_mul_i32 s10, s12, 3")
    p.i("s_add_u32 s9, s9, s10")
    p.i("s_add_u32 s10, s9, 1")
    p.i("v_lshlrev_b32 v13, 4, v0")
    p.i("s_lshl_b32 s13, s8, 10")
    p.i("v_add_u32 v14, s13, v13")
    p.i("s_sub_u32 s14, s13, 8")
    p.i("s_max_i32 s14, s14, 0")
    for c in range(3):
        p.i(f"s_lshl_b32 s{72 + c}, s{9 + c}, 12")
        p.i(f"s_add_u32 s{76 + c}, s{72 + c}, s14")
        p.i(f"s_lshl_b32 s{80 + c}, s{9 + c}, 1")
        p.i(f"s_and_b32 s{80 + c}, s{80 + c}, 0xfffffffc")
    p.wait(lg=0)
    srd(p, SH, P_H, 640 * 4096)
    Q = [16 + 20 * c for c in range(3)]
    for c in range(3):
        p.i(f"buffer_load_dwordx4 {vr(Q[c], 4)}, v14, {sr(SH, 4)}, s{72 + c} offen", tag=f"h{c}")
    srd(p, SWS, P_WS, WS_SIZE)
    for c in range(3):
        p.i(f"s_add_u32 m0, s13, {c * SLOT + URO}")
        p.i(f"s_add_u32 s{72 + c}, s{72 + c}, {WS_UR:#x}")
        p.i(f"buffer_load_dwordx4 v14, {sr(SWS, 4)}, s{72 + c} offen lds", tag="ur")
    for c in range(3):
        p.i(f"s_load_dwordx2 s[{84 + 2 * c}:{85 + 2 * c}], s[{P_H}:{P_H + 1}], s{76 + c}")
        p.i(f"s_load_dword s{60 + c}, s[{P_D}:{P_D + 1}], s{80 + c}")
    srd(p, SX, P_X, X_BYTES)
    p.i("s_min_u32 s14, s8, 2")
    p.i(f"s_mul_i32 s14, s14, {SLOT}")
    p.i("v_bfe_u32 v8, v0, 1, 2")
    p.i(f"v_mul_u32_u24 v8, {CPY}, v8")
    p.i("v_and_b32 v9, 1, v0")
    p.i("v_lshl_add_u32 v8, v9, 4, v8")
    p.i(f"v_add_u32 v9, {URO + 4096}, v13")
    p.i("v_cmp_gt_u32 vcc, 32, v0")
    p.i("v_cndmask_b32 v8, v8, v9, vcc")
    p.i("v_add_u32 v8, s14, v8")
    for n in range(4):
        p.i(f"v_mov_b32 v{76 + n}, 0")
    p.i("ds_write_b128 v8, v[76:79]")
    p.i("v_and_b32 v8, 15, v0")
    p.i("v_lshrrev_b32 v9, 4, v0")
    p.i("v_sub_u32 v10, 15, v8")
    p.i("v_and_b32 v11, 3, v10")
    p.i("v_lshrrev_b32 v10, 2, v10")
    p.i(f"v_mul_u32_u24 v11, {CPY}, v11")
    p.i("v_lshl_add_u32 v11, v9, 4, v11")
    p.i("v_lshlrev_b32 v10, 3, v10")
    p.i("v_sub_u32 v11, v11, v10")
    p.i("s_and_b32 s14, s8, 1")
    p.i(f"s_mul_i32 s14, s14, {SLOT}")
    p.i("s_add_u32 s15, s14, 32")
    p.i(f"v_add_u32 v{VA_M}, s15, v11")
    p.i(f"v_add_u32 v{VA_C}, {2 * SLOT + 32}, v11")
    p.i("v_lshlrev_b32 v10, 5, v8")
    p.i("v_lshlrev_b32 v11, 4, v9")
    p.i("v_sub_u32 v11, v11, v10")
    p.i(f"s_add_u32 s15, s14, {URO + 480}")
    p.i(f"v_add_u32 v{VG_M}, s15, v11")
    p.i(f"v_add_u32 v{VG_C}, {2 * SLOT + URO + 480}, v11")
    p.i(f"v_lshl_add_u32 v{VYT}, v9, 3, v10")
    p.i(f"s_add_u32 s15, s14, {URO + 504}")
    p.i(f"v_sub_u32 v{VKV_M}, s15, v{VYT}")
    p.i(f"v_sub_u32 v{VKV_C}, {2 * SLOT + URO + 504}, v{VYT}")
    p.i("v_add_u32 v15, 32, v14")
    p.wait(lg=0)
    p.i("s_cmp_eq_u32 s8, 0")
    for n in range(6):
        p.i(f"s_cselect_b32 s{84 + n}, 0, s{84 + n}")
    for c in range(3):
        p.i(f"v_mov_b32 v{Q[c] + 8}, s{85 + 2 * c}")
        p.i(f"v_mov_b32 v{Q[c] + 16}, s{84 + 2 * c}")
        p.i(f"s_lshl_b32 s15, s{60 + c}, 16")
        p.i(f"s_and_b32 s{60 + c}, s{60 + c}, 0xffff0000")
        p.i(f"s_bitcmp1_b32 s{9 + c}, 0")
        p.i(f"s_cselect_b32 s{60 + c}, s{60 + c}, s15")
    p.i("s_bitcmp1_b32 s8, 0")
    p.i("s_cselect_b32 s63, s61, s60")
    p.i("s_cselect_b32 s64, s10, s9")
    p.i("s_lshl_b32 s64, s64, 12")
    p.i(f"s_add_u32 s64, s64, {WS_YT:#x}")
    p.i("s_lshl_b32 s65, s11, 12")
    p.i(f"s_add_u32 s65, s65, {WS_YT:#x}")
    p.i("s_mov_b32 s66, 0xfffefffe")
    for c in range(3):
        q, c1, c2, c3, m2 = Q[c], Q[c] + 4, Q[c] + 8, Q[c] + 12, Q[c] + 16
        p.wait(vm=f"h{c}")
        p.i(f"ds_write_b128 v15, {vr(q, 4)} offset:{c * SLOT}")
        p.i(f"v_mov_b32_dpp v{c2}, v{q + 3} wave_shr:1 row_mask:0xf bank_mask:0xf")
        p.i(f"v_mov_b32_dpp v{m2}, v{q + 2} wave_shr:1 row_mask:0xf bank_mask:0xf")
        for m in range(1, 4):
            p.i(f"v_mov_b32 v{c2 + m}, v{q + m - 1}")
        p.i(f"ds_write_b128 v15, {vr(c2, 4)} offset:{c * SLOT + 2 * CPY}")
        for m in range(4):
            p.i(f"v_alignbit_b32 v{c1 + m}, v{q + m}, v{c2 + m}, 16")
        p.i(f"ds_write_b128 v15, {vr(c1, 4)} offset:{c * SLOT + CPY}")
        p.i(f"v_alignbit_b32 v{c3}, v{c2}, v{m2}, 16")
        for m in range(1, 4):
            p.i(f"v_mov_b32 v{c3 + m}, v{c1 + m - 1}")
        p.i(f"ds_write_b128 v15, {vr(c3, 4)} offset:{c * SLOT + 3 * CPY}")
    p.wait(vm=0, lg=0)
    p.i("s_barrier")
    p.i("s_mul_i32 s14, s8, 40")
    p.i("s_and_b32 s15, s14, 0xfffffff0")
    p.i("s_sub_u32 s67, s14, s15")
    p.i("s_mul_i32 s14, s7, 160")
    p.i("s_add_u32 s15, s15, s14")
    p.i("s_mul_i32 s14, s6, 81920")
    p.i("s_add_u32 s15, s15, s14")
    p.i("s_mul_i32 s68, s8, 3072")
    p.i(f"s_add_u32 s68, s68, {XB}")
    for i in range(3):
        p.i(f"v_add_u32 v8, {64 * i}, v0")
        p.i("v_mul_u32_u24 v9, 0x5556, v8")
        p.i("v_lshrrev_b32 v9, 16, v9")
        p.i("v_mul_u32_u24 v10, 3, v9")
        p.i("v_sub_u32 v10, v8, v10")
        p.i("v_mul_u32_u24 v9, 0x500, v9")
        p.i(f"v_lshl_add_u32 v{10 + i}, v10, 4, v9")
        p.i(f"s_add_u32 m0, s68, {1024 * i}")
        p.i(f"buffer_load_dwordx4 v{10 + i}, {sr(SX, 4)}, s15 offen lds", tag="x")
    p.i("s_lshl_b32 s14, s6, 9")
    p.i(f"s_add_u32 s14, s14, {WS_STATS:#x}")
    p.i("v_lshlrev_b32 v8, 3, v0")
    p.i(f"buffer_load_dwordx2 v[250:251], v8, {sr(SWS, 4)}, s14 offen", tag="st")
    p.i("s_cmp_ge_u32 s8, 2")
    p.i("s_cbranch_scc1 K2_CX")
    p.i("s_lshl_b32 s14, s12, 1")
    p.i("s_add_u32 s14, s14, s8")
    for k in range(1, 4):
        p.i(f"s_cmp_eq_u32 s14, {k}")
        p.i(f"s_cbranch_scc1 K2_CY{k}")
    st = p.fork_state()
    for k in range(4):
        p.set_state(st)
        if k:
            p.label(f"K2_CY{k}")
        conv_main(p, cfg, [("M", 5), ("M", 3), ("M", 1), ("M", 0), ("C", 7 - k), ("C", k)], f"Y{k}")
        p.fence()
        p.i("s_branch K2_CP")
    p.set_state(st)
    p.label("K2_CX")
    conv_main(p, cfg, [("M", 7), ("M", 6), ("M", 4), ("M", 2)], "X")
    p.fence()
    p.label("K2_CP")
    p.vmq, p.lgq = [], []
    p.c("y' landing: LDS-DMA, sc1")
    p.i("v_lshrrev_b32 v8, 3, v0")
    p.i("v_lshlrev_b32 v8, 12, v8")
    p.i("v_and_b32 v9, 7, v0")
    p.i("v_lshl_add_u32 v8, v9, 4, v8")
    p.i("s_mul_i32 s14, s7, 80")
    p.i("s_mul_i32 s15, s8, 20")
    p.i("s_add_u32 s14, s14, s15")
    p.i("s_lshl_b32 s14, s14, 12")
    p.i("s_lshl_b32 s15, s6, 7")
    p.i("s_add_u32 s14, s14, s15")
    p.i(f"s_add_u32 s72, s14, {WS_YT:#x}")
    p.i("s_add_u32 s73, s72, 0x8000")
    p.i("s_add_u32 s74, s72, 0x10000")
    p.i("s_mul_i32 s69, s8, 5120")
    p.i(f"s_add_u32 s69, s69, {PB}")

    def poll_issue():
        for i in range(3):
            p.i(f"s_add_u32 m0, s69, {1024 * i}")
            if i == 2:
                p.i("s_mov_b32 exec_hi, 0")
            p.i(f"buffer_load_dwordx4 v8, {sr(SWS, 4)}, s{72 + i} offen sc1 lds", tag="y")
            if i == 2:
                p.i("s_mov_b32 exec_hi, -1")

    poll_issue()
    p.i("v_bfe_u32 v9, v0, 2, 2")
    p.i("v_lshlrev_b32 v9, 7, v9")
    p.i("v_lshrrev_b32 v10, 4, v0")
    p.i("v_lshl_add_u32 v9, v10, 5, v9")
    p.i("v_and_b32 v10, 3, v0")
    p.i("v_lshl_add_u32 v9, v10, 3, v9")
    p.i("v_add_u32 v9, s69, v9")
    p.i("v_add_u32 v12, s69, v13")
    p.i("v_mul_u32_u24 v10, 48, v0")
    p.i("s_add_u32 s68, s68, s67")
    p.i("v_add_u32 v10, s68, v10")
    XR, XF, XN, YR, PO = 16, 32, 56, 80, 96
    for k in range(5):
        p.i(f"ds_read_b64 {vr(XR + 2 * k, 2)}, v10 offset:{8 * k}", tag="xr")
    p.i("v_rcp_f32 v251, v251")
    p.wait(lg=0)
    for d in range(10):
        p.i(f"v_lshlrev_b32 v{XF + 2 * d}, 16, v{XR + d}")
        p.i(f"v_and_b32 v{XF + 2 * d + 1}, 0xffff0000, v{XR + d}")
    for n in range(20):
        p.i(f"v_sub_f32 v{XN + n}, v{XF + n}, v250")
    for n in range(20):
        p.i(f"v_mul_f32 v{XN + n}, v{XN + n}, v251")
    p.i("s_mov_b32 s70, 0x40000")
    p.label("K2_POLL")
    p.wait(vm=0)
    for k in range(5):
        p.i(f"ds_read_b64_tr_b16 {vr(YR + 2 * k, 2)}, v9 offset:{512 * k}", tag="yr")
    p.wait(lg=0)
    p.i(f"v_pk_max_u16 v14, v{YR}, v{YR + 1}")
    p.i(f"v_pk_max_u16 v15, v{YR + 2}, v{YR + 3}")
    for n in range(4, 10):
        p.i(f"v_pk_max_u16 v{14 + (n & 1)}, v{14 + (n & 1)}, v{YR + n}")
    p.i("v_pk_max_u16 v14, v14, v15")
    p.i("v_lshlrev_b32 v15, 16, v14")
    p.i("v_max_u32 v14, v14, v15")
    p.i("v_cmp_le_u32 vcc, 0xffff0000, v14")
    p.i("s_nop 1")
    p.i("s_cbranch_vccz K2_POLL_OK")
    st = p.fork_state()
    p.i("s_sub_u32 s70, s70, 1")
    p.i("s_cbranch_scc1 K2_POLL_OK")
    poll_issue()
    p.i("s_branch K2_POLL")
    p.set_state(st)
    p.label("K2_POLL_OK")
    for k in range(5):
        for e in range(4):
            src = YR + 2 * k + (e >> 1)
            o = PO + 4 * k + e
            if e & 1:
                p.i(f"v_and_b32 v{o}, 0xffff0000, v{src}")
            else:
                p.i(f"v_lshlrev_b32 v{o}, 16, v{src}")
        for e in range(4):
            o = PO + 4 * k + e
            p.i(f"v_fma_f32 v{o}, v{o}, v{XN + 4 * k + e}, v{XF + 4 * k + e}")
        p.i(f"ds_write_b128 v12, {vr(PO + 4 * k, 4)} offset:{1024 * k}")
    p.wait(lg=0)
    p.i("s_barrier")
    p.label("K2_END")
    p.i("s_endpgm")


def gen_k2(cfg):
    p = Prog("k2")
    p.label("k2_kernel")
    p.i("s_cmp_ge_u32 s2, 256")
    p.i("s_cbranch_scc1 K2_END")
    load_kernargs(p)
    p.i("v_lshrrev_b32 v1, 6, v0")
    p.i("v_and_b32 v0, 63, v0")
    p.i("v_readfirstlane_b32 s3, v1")
    p.i("s_and_b32 s4, s2, 7")
    p.i("s_lshr_b32 s5, s2, 3")
    p.i("s_lshr_b32 s6, s4, 1")
    p.i("s_lshl_b32 s6, s6, 3")
    p.i("s_and_b32 s7, s5, 7")
    p.i("s_add_u32 s6, s6, s7")
    p.i("s_and_b32 s7, s4, 1")
    p.i("s_lshl_b32 s7, s7, 2")
    p.i("s_lshr_b32 s8, s5, 3")
    p.i("s_add_u32 s7, s7, s8")
    p.i("s_cmp_ge_u32 s3, 4")
    p.i("s_cbranch_scc1 K2_CONV")
    st = p.fork_state()
    gemm2(p, cfg)
    p.set_state(st)
    conv(p, cfg)
    return p, LDS2
```

```python
import sys, json, os
sys.path.insert(0, os.path.dirname(__file__))
from k1 import gen_k1
try:
    from k2 import gen_k2
except ImportError:
    gen_k2 = None

NAME = "parallel_sum__ssm_conv_h3__glu_gated_geglu__prompt"

def kd(name, vgpr, sgpr):
    return f""".p2align 6
.amdhsa_kernel {name}
  .amdhsa_next_free_vgpr {vgpr}
  .amdhsa_next_free_sgpr {sgpr}
  .amdhsa_accum_offset {vgpr}
  .amdhsa_group_segment_fixed_size 0
  .amdhsa_kernarg_size 104
  .amdhsa_user_sgpr_count 2
  .amdhsa_user_sgpr_kernarg_segment_ptr 1
  .amdhsa_system_sgpr_workgroup_id_x 1
.end_amdhsa_kernel
"""

def build(cfg):
    k1 = gen_k1(cfg.get("k1", {}))
    ks = [("k1_kernel", k1, 163840)]
    if gen_k2 is not None and not cfg.get("only_k1"):
        k2, lds2 = gen_k2(cfg.get("k2", {}))
        ks.append(("k2_kernel", k2, lds2))
    out = ["; generated by gen/gen.py: two launches (GEMM1+GeGLU+pre-pass, then GEMM2+long conv+combine)"]
    for n, _, lds in ks:
        out.append(f"; @launch kernel={n} grid=(256,1,1) block=(512,1,1) lds={lds}")
    out.append('.amdgcn_target "amdgcn-amd-amdhsa--gfx950"')
    out.append(".text")
    for n, p, _ in ks:
        out.append(f".globl {n}\n.p2align 8\n.type {n},@function")
        out.append(p.text())
    out.append('.section .rodata,"a"')
    for n, _, _ in ks:
        out.append(kd(n, 256, 96))
    return "\n".join(out)

if __name__ == "__main__":
    cfg = json.loads(sys.argv[2]) if len(sys.argv) > 2 else {}
    path = sys.argv[1] if len(sys.argv) > 1 else f"cdna_kernels/{NAME}.s"
    open(path, "w").write(build(cfg))
    print("wrote", path, os.path.getsize(path))
```

```python
import re

REG_RE = re.compile(r"\b([vsa])(\d+)\b|\b([vsa])\[(\d+):(\d+)\]|\b(vcc|exec|m0|scc)\b")

TRANS = ("v_exp_f32", "v_log_f32", "v_rcp_f32", "v_rsq_f32", "v_sqrt_f32", "v_sin_f32", "v_cos_f32")


def regs_of(tok):
    out = set()
    for m in REG_RE.finditer(tok):
        if m.group(1):
            out.add((m.group(1), int(m.group(2))))
        elif m.group(3):
            for i in range(int(m.group(4)), int(m.group(5)) + 1):
                out.add((m.group(3), i))
        else:
            n = m.group(6)
            if n == "vcc":
                out.add(("s", 106)); out.add(("s", 107))
            elif n == "exec":
                out.add(("x", 0))
            elif n == "m0":
                out.add(("m", 0))
    return out


def split_ops(s):
    ops, depth, cur = [], 0, ""
    for ch in s:
        if ch == "[":
            depth += 1
        if ch == "]":
            depth -= 1
        if ch == "," and depth == 0:
            ops.append(cur.strip()); cur = ""
        else:
            cur += ch
    if cur.strip():
        ops.append(cur.strip())
    return ops


class Ins:
    __slots__ = ("text", "mn", "ops", "dst", "src", "cls", "states", "A", "B", "C", "wide", "dpp")

    def __init__(self, text):
        self.text = text
        t = text.split(";")[0].strip()
        parts = t.split(None, 1)
        self.mn = mn = parts[0]
        rest = parts[1] if len(parts) > 1 else ""
        ops = split_ops(rest)
        self.ops = ops
        self.dst, self.src = set(), set()
        self.A = self.B = self.C = set()
        self.states = 1
        self.wide = set()
        self.dpp = ("quad_perm" in rest or "row_" in rest or "wave_" in rest)
        R = [regs_of(o) for o in ops]
        allr = set().union(*R) if R else set()
        if mn.startswith("v_mfma"):
            self.cls = "mfma"
            self.dst = R[0]; self.A = R[1]; self.B = R[2]; self.C = R[3]
            self.src = R[1] | R[2] | R[3]
        elif mn.startswith("v_"):
            self.cls = "trans" if mn.replace("_e32", "").replace("_e64", "") in TRANS else "valu"
            self.dst = set(R[0])
            self.src = set().union(*R[1:]) if len(R) > 1 else set()
            if mn.startswith(("v_fmac", "v_mac", "v_pk_fmac", "v_dot2c")):
                self.src |= R[0]
            if mn.startswith(("v_add_co", "v_sub_co", "v_addc_co", "v_subb_co", "v_subrev_co")):
                self.dst |= R[1]
                self.src = set().union(*R[2:])
            if mn.startswith("v_permlane") and "swap" in mn:
                self.dst = R[0] | R[1]; self.src = R[0] | R[1]
            if mn.startswith("v_swap"):
                self.dst = R[0] | R[1]; self.src = R[0] | R[1]
            if mn.startswith("v_cmpx"):
                self.dst |= {("x", 0)}
            if mn.startswith("v_writelane"):
                self.src |= R[0]
        elif mn.startswith(("buffer_load", "global_load")):
            self.cls = "vmem"
            if re.search(r"\blds\b", rest) or "_lds_" in mn:
                self.src = allr | {("m", 0)}
                self.cls = "vmem_lds"
            else:
                self.dst = R[0]; self.src = set().union(*R[1:])
        elif mn in ("buffer_wbl2", "buffer_inv"):
            self.cls = "vmem"
        elif mn.startswith(("buffer_store", "global_store")):
            self.cls = "vmem"
            self.src = allr
            if mn.endswith(("x3", "x4")):
                self.wide = R[0] if mn.startswith("buffer") else R[1]
        elif mn.startswith(("buffer_atomic", "global_atomic")):
            self.cls = "vmem"
            self.src = allr
            if re.search(r"\bsc0\b", rest):
                self.dst = R[0]
        elif mn.startswith(("ds_read", "ds_bpermute", "ds_permute", "ds_swizzle")):
            self.cls = "ds"
            self.dst = R[0]; self.src = set().union(*R[1:])
        elif mn.startswith("ds_"):
            self.cls = "ds"
            self.src = allr
        elif mn.startswith(("s_load", "s_memtime", "s_memrealtime")):
            self.cls = "smem"
            self.dst = R[0]; self.src = set().union(*R[1:]) if len(R) > 1 else set()
        elif mn == "s_nop":
            self.cls = "nop"; self.states = int(ops[0], 0) + 1
        elif mn.startswith("s_"):
            self.cls = "salu"
            if mn.startswith(("s_cmp", "s_waitcnt", "s_barrier", "s_branch", "s_cbranch", "s_endpgm", "s_setprio",
                              "s_sleep", "s_bitcmp")):
                self.src = allr
            else:
                self.dst = set(R[0]) if R else set()
                self.src = set().union(*R[1:]) if len(R) > 1 else set()
                if "saveexec" in mn:
                    self.dst |= {("x", 0)}
                if mn.startswith(("s_addk", "s_mulk")):
                    self.src |= R[0]
        else:
            raise ValueError("unknown instruction: " + text)


def V(r):
    return {x for x in r if x[0] in "va"}


def S(r):
    return {x for x in r if x[0] == "s"}


class Prog:
    def __init__(self, name):
        self.name = name
        self.lines = []
        self.hist = []
        self.vmq = []
        self.lgq = []
        self.nerr = 0
        self.prof = False

    def probe(self, k, cyc=False):
        if self.prof:
            self._emit(Ins(f"{'s_memtime' if cyc else 's_memrealtime'} s[{90 + 2 * k}:{91 + 2 * k}]"))

    def probe_init(self):
        if self.prof:
            for k in range(6):
                self._emit(Ins(f"s_mov_b64 s[{90 + 2 * k}:{91 + 2 * k}], 0"))

    def probe_end(self, srd, base):
        if self.prof:
            self.wait(lg=0)
            for k in range(6):
                self.i(f"v_writelane_b32 v255, s{90 + 2 * k}, {k}")
            self.i("v_mbcnt_lo_u32_b32 v254, -1, 0")
            self.i("v_lshlrev_b32 v254, 2, v254")
            self.i("s_lshl_b32 s90, s2, 3")
            self.i("s_add_u32 s90, s90, s3")
            self.i("s_lshl_b32 s90, s90, 5")
            self.i(f"s_add_u32 s90, s90, {base:#x}")
            self.i("s_mov_b64 exec, 0xff")
            self.i(f"buffer_store_dword v255, v254, s[{srd}:{srd + 3}], s90 offen")

    def raw(self, s):
        self.lines.append(s)

    def c(self, s):
        self.lines.append("    ; " + s)

    def label(self, l):
        self.lines.append(l + ":")

    def err(self, msg, ins):
        self.nerr += 1
        raise RuntimeError(f"[{self.name}] {msg}: {ins.text}\n  recent:\n    " +
                           "\n    ".join(h.text for h in self.hist[-14:]))

    def need(self, ins):
        need = 0
        dist = 0
        for h in reversed(self.hist[-24:]):
            req = 0
            hv, hs = V(h.dst), S(h.dst)
            if h.cls in ("valu", "trans"):
                if ins.cls == "mfma" and hv & ins.src:
                    req = max(req, 2)
                if h.cls == "trans" and ins.cls != "trans" and hv & (ins.src | ins.dst):
                    req = max(req, 1)
                if ins.mn.startswith(("v_readfirstlane", "v_readlane")) and hv & ins.src:
                    req = max(req, 1)
                if ins.mn.startswith("v_permlane") and hv & ins.src:
                    req = max(req, 2)
                if ins.dpp and hv & ins.src:
                    req = max(req, 2)
                if h.mn.startswith("v_dot") and ins.mn != h.mn and hv & (ins.src | ins.dst):
                    req = max(req, 4)
                if hs:
                    if ins.cls in ("vmem", "vmem_lds") and hs & ins.src:
                        req = max(req, 5)
                    if ins.cls in ("valu", "trans", "mfma") and hs & ins.src:
                        req = max(req, 4 if ins.mn.startswith(("v_readlane", "v_writelane")) else 2)
                if ("x", 0) in h.dst and ins.cls in ("valu", "trans", "mfma"):
                    req = max(req, 5)
                if "sdwa" in h.text or "op_sel" in h.text:
                    if ins.cls in ("valu", "trans", "mfma") and hv & (ins.src | ins.dst):
                        req = max(req, 2 if ins.cls == "mfma" else 1)
            if h.cls == "mfma":
                big = "32x32" in h.mn
                n_rw, n_c, n_war = (12, 10, 7) if big else (8, 6, 3)
                if ins.cls == "mfma":
                    if hv & (ins.A | ins.B):
                        req = max(req, n_rw)
                    if hv & ins.C and ins.C != h.dst:
                        req = max(req, n_c)
                    if hv & ins.dst and ins.dst != h.dst:
                        req = max(req, n_rw)
                    if hv & ins.dst and not (hv & ins.C):
                        req = max(req, n_rw)
                else:
                    if hv & (ins.src | ins.dst):
                        req = max(req, n_rw)
                    if ins.cls in ("valu", "trans") and V(h.C) & ins.dst:
                        req = max(req, n_war)
            if h.cls == "salu" and ("m", 0) in h.dst and ins.cls == "vmem_lds":
                req = max(req, 1)
            if h.wide and h.wide & ins.dst:
                req = max(req, 2)
            if req > dist:
                need = max(need, req - dist)
            dist += h.states
            if dist > 20:
                break
        return need

    def i(self, text, tag=None, auto=True):
        ins = Ins(text)
        if ins.cls in ("ds", "smem") and len(self.lgq) >= 15:
            self._emit(Ins("s_waitcnt lgkmcnt(14)"))
            self.lgq = self.lgq[-14:]
        touched = ins.src | ins.dst
        for q, nm in ((self.vmq, "vm"), (self.lgq, "lgkm")):
            for t, d in q:
                if d & touched:
                    self.err(f"touches regs of outstanding {nm} op '{t}'", ins)
        n = self.need(ins)
        if n:
            if not auto:
                self.err(f"hazard needs {n} more states", ins)
            self._emit(Ins(f"s_nop {n - 1}"))
        self._emit(ins)
        if ins.cls in ("vmem", "vmem_lds"):
            self.vmq.append((tag, set(ins.dst)))
            assert len(self.vmq) <= 63, "vmcnt overflow"
        elif ins.cls in ("ds", "smem"):
            self.lgq.append((tag, set(ins.dst), ) if True else None)
        return ins

    def _emit(self, ins):
        self.lines.append("    " + ins.text)
        self.hist.append(ins)

    def _cnt(self, q, tag):
        idx = [k for k, (t, _) in enumerate(q) if t == tag]
        if not idx:
            return None
        return len(q) - 1 - max(idx)

    def wait(self, vm=None, lg=None):
        parts = []
        if vm is not None:
            n = 0 if vm == 0 else self._cnt(self.vmq, vm)
            if n is not None and n < len(self.vmq) or (vm == 0):
                n = n or 0
                parts.append(f"vmcnt({n})")
                self.vmq = self.vmq[len(self.vmq) - n:] if n else []
        if lg is not None:
            n = 0 if lg == 0 else self._cnt(self.lgq, lg)
            if n is not None and n < len(self.lgq) or (lg == 0):
                n = n or 0
                if n > 15:
                    n = 15
                parts.append(f"lgkmcnt({n})")
                self.lgq = self.lgq[len(self.lgq) - n:] if n else []
        if parts:
            self._emit(Ins("s_waitcnt " + " ".join(parts)))

    def fence(self, n=20):
        dist = 0
        need = 0
        for h in reversed(self.hist[-24:]):
            req = 0
            if h.cls == "mfma":
                req = 12 if "32x32" in h.mn else 8
            elif h.cls in ("valu", "trans"):
                req = 5 if (S(h.dst) or ("x", 0) in h.dst) else 2
            elif h.wide:
                req = 2
            elif h.cls == "salu" and ("m", 0) in h.dst:
                req = 1
            if req > dist:
                need = max(need, req - dist)
            dist += h.states
            if dist > 20:
                break
        if need:
            self._emit(Ins(f"s_nop {need - 1}"))
        self.hist = []

    def fork_state(self):
        return (list(self.hist), list(self.vmq), list(self.lgq))

    def set_state(self, st):
        self.hist, self.vmq, self.lgq = list(st[0]), list(st[1]), list(st[2])

    def text(self):
        return "\n".join(self.lines) + "\n"


def vr(base, n=1):
    return f"v{base}" if n == 1 else f"v[{base}:{base + n - 1}]"


def sr(base, n=1):
    return f"s{base}" if n == 1 else f"s[{base}:{base + n - 1}]"
```

```python
import math
from asmlib import Prog, vr, sr
from common import *

SLOTB = [0, 90112, 45056]
WOFF = 16384
EXTRA = 135168
KVT = EXTRA
WDS = KVT + 11520
CSPL = WDS + 10240
CSX = CSPL + 4096
STX = CSX + 1024
STT = STX + 1024
FLG = STT + 64
LDS1 = 163840

SX, SWM, SWC, SWS, SDBG, SK_, SV_, SSK, SWD = 44, 48, 52, 56, 60, 64, 68, 72, 76
S_X0 = 80
S_M0 = 84
S_E7 = 86
S_H0 = 88
S_WD = 42

V_H = 10
V_L16 = 11
ACC, WF, XF = 16, 80, 112
VWA, VXA = 144, 147
VD = 153
V_KVW, V_KVR, V_URO, V_WDR = 160, 161, 162, 163
VWD = 164
T0 = 176
CS, STR, CON, TMP, OUT = 176, 208, 212, 220, 228


def krow(p, dst, rho, t):
    p.i(f"v_bfe_u32 v{t}, v{rho}, 2, 2")
    p.i(f"v_and_b32 v{dst}, 3, v{rho}")
    p.i(f"v_lshl_add_u32 v{dst}, v{t}, 3, v{dst}")
    p.i(f"v_lshrrev_b32 v{t}, 4, v{rho}")
    p.i(f"v_lshl_add_u32 v{dst}, v{t}, 2, v{dst}")


def geometry(p):
    p.i("v_lshrrev_b32 v1, 6, v0")
    p.i("v_and_b32 v0, 63, v0")
    p.i("v_readfirstlane_b32 s3, v1")
    p.i("s_and_b32 s4, s2, 7")
    p.i("s_lshr_b32 s5, s2, 3")
    p.i("s_and_b32 s12, s4, 1")
    p.i("s_lshr_b32 s13, s4, 1")
    p.i("s_lshl_b32 s6, s12, 3")
    p.i("s_and_b32 s14, s5, 7")
    p.i("s_add_u32 s6, s6, s14")
    p.i("s_lshl_b32 s7, s13, 2")
    p.i("s_lshr_b32 s14, s5, 3")
    p.i("s_add_u32 s7, s7, s14")
    p.i("s_lshl_b32 s8, s12, 4")
    p.i("s_lshl_b32 s14, s13, 2")
    p.i("s_add_u32 s8, s8, s14")
    p.i("s_and_b32 s14, s5, 3")
    p.i("s_add_u32 s8, s8, s14")
    p.i("s_lshr_b32 s9, s5, 2")
    p.i("s_and_b32 s10, s3, 3")
    p.i("s_mul_i32 s11, s7, 27")
    p.i("s_lshr_b32 s11, s11, 2")


def phase1(p, g, cfg):
    NP = 4 - g
    L = cfg.get("L", 5)
    fused = cfg.get("fused", False)
    nt = " nt" if cfg.get("nt", False) else ""

    def acc(rt, m, t):
        return ACC + ((m * NP + t) * 2 + rt) * 4

    def xreg(ks, rt):
        return XF + (ks % 4) * 8 + rt * 4

    p.c(f"---- phase 1, group {g}")
    p.i(f"v_lshlrev_b32 v{V_L16}, 4, v0")
    p.i("v_and_b32 v2, 15, v0")
    p.i("v_lshrrev_b32 v3, 4, v0")
    p.i("s_lshl_b32 s12, s6, 7")
    p.i("s_lshl_b32 s13, s7, 3")
    p.i("s_add_u32 s12, s12, s13")
    p.i("s_add_u32 s12, s12, s3")
    p.i("s_mul_i32 s12, s12, 1280")
    for n in range(4):
        p.i(f"v_mov_b32 v{T0 + 4 + n}, 0")
        p.i(f"v_mov_b32 v{T0 + 16 + n}, 0")
    p.i("s_lshr_b32 s13, s6, 1")
    p.i("s_mul_i32 s13, s13, 80")
    p.i("s_mul_i32 s14, s3, 10")
    p.i("s_add_u32 s13, s13, s14")
    p.i("s_mul_i32 s13, s13, 3456")
    p.i("s_lshl_b32 s14, s11, 5")
    p.i("s_add_u32 s13, s13, s14")
    p.i("v_mul_u32_u24 v4, 3456, v3")
    p.i("v_lshl_add_u32 v4, v2, 4, v4")
    if g == 0:
        p.i("v_lshrrev_b32 v5, 3, v0")
        p.i("v_mul_u32_u24 v5, 1280, v5")
        p.i("s_and_b32 s15, s10, 1")
        p.i("s_lshl_b32 s15, s15, 2")
        p.i("v_or_b32 v6, s15, v3")
        p.i("v_and_b32 v7, 7, v0")
        p.i("v_xor_b32 v6, v6, v7")
        p.i(f"v_lshl_add_u32 v{VD}, v6, 4, v5")
        p.i("s_lshl_b32 s15, s6, 4")
        p.i("s_add_u32 s15, s15, s10")
        p.i(f"s_mul_i32 s{S_X0}, s15, 10240")
        for i in range(1, 4):
            p.i(f"s_add_u32 s{S_X0 + i}, s{S_X0}, {i * 40960}")
        p.i(f"s_lshl_b32 s{S_M0}, s10, 10")
    else:
        for i in range(7):
            p.i(f"v_add_u32 v5, {64 * i}, v0")
            p.i("v_mul_u32_u24 v6, 4682, v5")
            p.i("v_lshrrev_b32 v6, 16, v6")
            p.i("v_mul_u32_u24 v7, 14, v6")
            p.i("v_sub_u32 v5, v5, v7")
            krow(p, 7, 6, 8)
            p.i("v_mul_u32_u24 v7, 3456, v7")
            p.i(f"v_lshl_add_u32 v{VD + i}, v5, 4, v7")
        p.i("s_lshr_b32 s15, s10, 1")
        p.i("s_mul_i32 s15, s15, 110592")
        p.i(f"s_add_u32 s{S_X0}, s15, s14")
        p.i(f"s_mul_i32 s{S_M0}, s10, 7168")
        p.i(f"s_add_u32 s{S_M0}, s{S_M0}, {WOFF}")
    p.wait(lg=0)
    srd(p, SX, P_X, X_BYTES)
    p.i(f"buffer_load_dwordx4 {vr(T0, 4)}, v{V_L16}, {sr(SX, 4)}, s12 offen", tag="st")
    p.i("s_mov_b64 exec, 0xffff")
    p.i(f"buffer_load_dwordx4 {vr(T0 + 4, 4)}, v{V_L16}, {sr(SX, 4)}, s12 offen offset:1024", tag="st")
    p.i("s_mov_b64 exec, -1")

    def wsel(base, bit_src):
        p.i(f"s_bitcmp0_b32 s{bit_src}, 0")
        p.i(f"s_cselect_b32 s{base}, s{P_WG}, s{P_WU}")
        p.i(f"s_cselect_b32 s{base + 1}, s{P_WG + 1}, s{P_WU + 1}")
        p.i(f"s_and_b32 s{base + 1}, s{base + 1}, 0xffff")
        p.i(f"s_mov_b32 s{base + 2}, {W_BYTES:#x}")
        p.i(f"s_mov_b32 s{base + 3}, 0x20000")

    wsel(SWC, 6)
    for i in range(3):
        if i == 2:
            p.i("s_mov_b32 exec_hi, 0")
        p.i(f"buffer_load_dwordx4 {vr(T0 + 8 + 4 * i, 4)}, v4, {sr(SWC, 4)}, s13 offen", tag="cs")
        if i < 2:
            p.i(f"s_add_u32 s13, s13, {4 * 3456}")
    p.i("s_mov_b32 exec_hi, -1")
    if g == 1:
        wsel(SWM, 10)

    def dma(P):
        sb = SLOTB[P % 3]
        fs = []
        if g == 0:
            for i in range(4):
                def f(i=i):
                    p.i(f"s_add_u32 s15, s{S_X0 + i}, {128 * P}")
                    p.i(f"s_add_u32 m0, s{S_M0}, {sb + i * 4096}")
                    p.i(f"buffer_load_dwordx4 v{VD}, {sr(SX, 4)}, s15 offen lds", tag=f"D{P}")
                fs.append(f)
        else:
            for i in range(7):
                def f(i=i):
                    if i == 0:
                        p.i(f"s_add_u32 s{S_M0 + 1}, s{S_X0}, {2 * P * 110592}")
                    p.i(f"s_add_u32 m0, s{S_M0}, {sb + i * 1024}")
                    p.i(f"buffer_load_dwordx4 v{VD + i}, {sr(SWM, 4)}, s{S_M0 + 1} offen lds", tag=f"D{P}")
                fs.append(f)
        return fs

    for f in dma(0) + dma(1):
        f()
    KR, VR_, SKR = 204, 215, 224
    srd(p, SK_, P_K, X_BYTES)
    srd(p, SV_, P_V, X_BYTES)
    srd(p, SSK, P_SK, 640 * 8)
    p.i("s_lshl_b32 s12, s8, 6")
    p.i("s_lshl_b32 s13, s3, 3")
    p.i("s_add_u32 s12, s12, s13")
    p.i("s_mul_i32 s12, s12, 1280")
    p.i("s_mul_i32 s13, s9, 160")
    p.i("s_add_u32 s12, s12, s13")
    p.i("v_lshl_add_u32 v5, v0, 2, s12")
    p.i("s_mul_i32 s13, s9, 640")
    p.i(f"v_add_u32 v6, s13, v{V_L16}")
    p.i("s_mov_b32 exec_hi, 0xff")
    p.i(f"buffer_load_dwordx4 {vr(SKR, 4)}, v6, {sr(SSK, 4)}, 0 offen", tag="kv")
    for i in range(11):
        p.i(f"v_add_u32 v{7 + (i & 1)}, {((i - 3) * 1280) & 0xffffffff:#x}, v5")
        p.i(f"buffer_load_dword v{KR + i}, v{7 + (i & 1)}, {sr(SK_, 4)}, 0 offen{nt}", tag="kv")
    for i in range(8):
        p.i(f"v_add_u32 v{7 + (i & 1)}, {i * 1280:#x}, v5")
        p.i(f"buffer_load_dword v{VR_ + i}, v{7 + (i & 1)}, {sr(SV_, 4)}, 0 offen{nt}", tag="kv")
    p.i("s_mov_b32 exec_hi, -1")
    for f in dma(2):
        f()
    srd(p, SWS, P_WS, WS_SIZE)
    srd(p, SDBG, P_DBG, 256)
    if g == 1:
        srd(p, SWD, P_WD, W_BYTES)
        for i in range(5):
            p.i(f"v_add_u32 v5, {64 * i}, v0")
            p.i("v_mul_u32_u24 v6, 6554, v5")
            p.i("v_lshrrev_b32 v6, 16, v6")
            p.i("v_mul_u32_u24 v7, 10, v6")
            p.i("v_sub_u32 v5, v5, v7")
            krow(p, 7, 6, 8)
            p.i("v_mul_u32_u24 v7, 1280, v7")
            p.i(f"v_lshl_add_u32 v{VWD + i}, v5, 4, v7")
        p.i("s_lshl_b32 s12, s10, 5")
        p.i("s_add_u32 s12, s12, s8")
        p.i("s_cmp_lt_u32 s12, 54")
        p.i(f"s_cselect_b64 s[{S_WD}:{S_WD + 1}], -1, 0")
        p.i("s_min_u32 s12, s12, 53")
        p.i("s_mul_i32 s13, s12, 40960")
        p.i("s_mul_i32 s14, s9, 160")
        p.i("s_add_u32 s13, s13, s14")
        p.i("s_and_b32 s14, s10, 1")
        p.i("s_mul_i32 s14, s14, 5120")
        p.i(f"s_add_u32 s14, s14, {WDS}")
        p.i(f"s_mov_b64 exec, s[{S_WD}:{S_WD + 1}]")
        for i in range(5):
            p.i(f"s_add_u32 m0, s14, {1024 * i}")
            p.i(f"buffer_load_dwordx4 v{VWD + i}, {sr(SWD, 4)}, s13 offen{nt} lds", tag="wd")
        p.i("s_mov_b64 exec, -1")
        p.i("v_lshrrev_b32 v5, 2, v0")
        p.i("v_mul_u32_u24 v5, 160, v5")
        p.i("v_and_b32 v6, 3, v0")
        p.i("v_lshl_add_u32 v5, v6, 3, v5")
        p.i(f"v_add_u32 v{V_WDR}, s14, v5")
        p.i("s_mul_i32 s89, s9, 270")
        p.i("s_add_u32 s89, s89, s12")
        p.i("s_lshl_b32 s89, s89, 10")
        p.i(f"s_add_u32 s89, s89, {WS_WD:#x}")
        p.i("s_cmp_eq_u32 s3, 7")
        p.i(f"s_cselect_b64 s[{S_E7}:{S_E7 + 1}], -1, 0")
    for n in range(4):
        p.i(f"v_mov_b32 v{4 + n}, -1")
    p.i("s_mul_i32 s12, s9, 327680")
    p.i("s_mul_i32 s13, s8, 10240")
    p.i("s_add_u32 s12, s12, s13")
    p.i("s_mul_i32 s13, s3, 1280")
    p.i("s_add_u32 s12, s12, s13")
    p.i(f"s_add_u32 s12, s12, {WS_YT:#x}")
    p.i(f"buffer_store_dwordx4 v[4:7], v{V_L16}, {sr(SWS, 4)}, s12 offen sc1", tag="pst")
    p.i("s_mov_b64 exec, 0xffff")
    p.i(f"buffer_store_dwordx4 v[4:7], v{V_L16}, {sr(SWS, 4)}, s12 offen offset:1024 sc1", tag="pst")
    p.i("s_mov_b64 exec, -1")
    p.i("v_lshrrev_b32 v8, 2, v0")
    p.i("v_mul_u32_u24 v8, 224, v8")
    p.i("v_and_b32 v9, 3, v0")
    p.i("v_lshl_add_u32 v8, v9, 3, v8")
    for s in range(3):
        p.i(f"v_add_u32 v{VWA + s}, {SLOTB[s] + WOFF + g * 128}, v8")
    p.i("v_lshrrev_b32 v8, 1, v2")
    p.i("v_xor_b32 v8, v8, v3")
    p.i("v_lshlrev_b32 v8, 4, v8")
    p.i("v_lshl_add_u32 v8, v2, 7, v8")
    p.i("s_lshl_b32 s12, s10, 12")
    p.i("v_add_u32 v8, s12, v8")
    p.i("v_xor_b32 v9, 64, v8")
    for s in range(3):
        p.i(f"v_add_u32 v{VXA + 2 * s}, {SLOTB[s]}, v8")
        p.i(f"v_add_u32 v{VXA + 2 * s + 1}, {SLOTB[s]}, v9")
    p.i("v_and_b32 v8, 1, v3")
    p.i("v_mul_u32_u24 v8, 55296, v8")
    p.i("v_lshrrev_b32 v9, 1, v3")
    p.i("v_lshl_add_u32 v9, v9, 4, v2")
    p.i(f"v_lshl_add_u32 v{V_H}, v9, 4, v8")
    p.i("s_lshl_b32 s12, s6, 3")
    p.i("s_lshl_b32 s13, s10, 1")
    p.i("s_add_u32 s12, s12, s13")
    p.i("s_mul_i32 s12, s12, 108")
    p.i("s_add_u32 s12, s12, s11")
    if g:
        p.i("s_add_u32 s12, s12, 4")
    p.i(f"s_lshl_b32 s{S_H0}, s12, 9")
    p.i("v_mul_u32_u24 v8, 288, v0")
    p.i("s_lshl_b32 s12, s3, 4")
    p.i(f"s_sub_u32 s12, {KVT + 112}, s12")
    p.i(f"v_add_u32 v{V_KVW}, s12, v8")
    p.i("v_lshrrev_b32 v8, 3, v0")
    p.i("v_and_b32 v9, 7, v0")
    p.i("v_mul_u32_u24 v12, 144, v8")
    p.i("v_lshl_add_u32 v12, v9, 4, v12")
    p.i("s_mul_i32 s12, s3, 1440")
    p.i(f"s_add_u32 s12, s12, {KVT}")
    p.i(f"v_add_u32 v{V_KVR}, s12, v12")
    p.i("v_lshlrev_b32 v8, 12, v8")
    p.i("v_lshl_add_u32 v8, v9, 4, v8")
    p.i("s_mul_i32 s12, s9, 80")
    p.i("s_mul_i32 s13, s3, 10")
    p.i("s_add_u32 s12, s12, s13")
    p.i("s_lshl_b32 s12, s12, 12")
    p.i("s_lshl_b32 s13, s8, 7")
    p.i("s_sub_u32 s12, s12, s13")
    p.i(f"s_add_u32 s12, s12, {WS_UR + 3968:#x}")
    p.i(f"v_add_u32 v{V_URO}, s12, v8")

    p.wait(vm="st")
    p.i("v_mov_b32 v8, 0")
    p.i("v_mov_b32 v9, 0")
    p.i("s_mov_b32 s12, 0x3f803f80")
    for n in range(8):
        p.i(f"v_dot2c_f32_bf16 v8, s12, v{T0 + n}")
        p.i(f"v_dot2c_f32_bf16 v9, v{T0 + n}, v{T0 + n}")
    for mod in ("quad_perm:[1,0,3,2] row_mask:0xf", "quad_perm:[2,3,0,1] row_mask:0xf", "row_half_mirror row_mask:0xf",
                "row_mirror row_mask:0xf", "row_bcast:15 row_mask:0xa", "row_bcast:31 row_mask:0xc"):
        p.i(f"v_add_f32_dpp v8, v8, v8 {mod} bank_mask:0xf")
        p.i(f"v_add_f32_dpp v9, v9, v9 {mod} bank_mask:0xf")
    p.i(f"v_mul_f32 v8, {f32(1.0 / 640)}, v8")
    p.i(f"v_mul_f32 v9, {f32(1.0 / 640)}, v9")
    p.i("v_fma_f32 v9, -v8, v8, v9")
    p.i("v_max_f32 v9, 0, v9")
    p.i("v_cvt_pk_bf16_f32 v8, v8, v9")
    p.i("v_and_b32 v9, 0xffff0000, v8")
    p.i(f"v_add_f32 v9, {f32(1e-5)}, v9")
    p.i("v_cvt_pk_bf16_f32 v9, v9, v9")
    p.i("v_and_b32 v9, 0xffff0000, v9")
    p.i("v_sqrt_f32 v9, v9")
    p.i("v_lshlrev_b32 v8, 16, v8")
    p.i("v_cvt_pk_bf16_f32 v9, v9, v9")
    p.i("v_and_b32 v9, 0xffff0000, v9")
    p.i("s_lshl_b32 s12, s3, 3")
    p.i(f"s_add_u32 s12, s12, {STT}")
    p.i("v_mov_b32 v12, s12")
    p.i("s_mov_b32 exec_lo, 0")
    p.i("s_mov_b32 exec_hi, 0x80000000")
    p.i("ds_write_b64 v12, v[8:9]")
    p.i("s_mov_b64 exec, -1")
    p.wait(vm="cs")
    CA = T0 + 20
    for d in range(4):
        p.i(f"v_lshlrev_b32 v{CA + 2 * d}, 16, v{T0 + 8 + d}")
        p.i(f"v_and_b32 v{CA + 2 * d + 1}, 0xffff0000, v{T0 + 8 + d}")
    for i in (1, 2):
        for d in range(4):
            r = T0 + 8 + 4 * i + d
            p.i(f"v_lshlrev_b32 v{T0 + 2 * d}, 16, v{r}")
            p.i(f"v_and_b32 v{T0 + 2 * d + 1}, 0xffff0000, v{r}")
        for e in range(8):
            p.i(f"v_add_f32 v{CA + e}, v{CA + e}, v{T0 + e}")
    for e in range(4):
        p.i(f"v_permlane32_swap_b32 v{CA + e}, v{CA + e + 4}")
    for e in range(4):
        p.i(f"v_add_f32 v{CA + e}, v{CA + e}, v{CA + e + 4}")
    for e in range(2):
        p.i(f"v_permlane16_swap_b32 v{CA + e}, v{CA + e + 2}")
    for e in range(2):
        p.i(f"v_add_f32 v{CA + e}, v{CA + e}, v{CA + e + 2}")
    p.i("v_lshlrev_b32 v8, 5, v2")
    p.i("v_lshl_add_u32 v8, v3, 3, v8")
    p.i("s_lshl_b32 s12, s3, 9")
    p.i(f"s_add_u32 s12, s12, {CSPL}")
    p.i("v_add_u32 v8, s12, v8")
    p.i(f"ds_write_b64 v8, {vr(CA, 2)}")
    p.wait(lg=0)

    frags = [(ks, m, t) for ks in range(16) for m in range(2) for t in range(NP)]
    frags += [(ks, m, t) for t in range(NP) for ks in range(16, 20) for m in range(2)]
    N = len(frags)
    PM = 8 * NP
    side = {n: [] for n in range(2 * N + 1)}

    def spread(ops, start, stop):
        n = len(ops)
        for k, o in enumerate(ops):
            f = (lambda o=o: p.i(o)) if isinstance(o, str) else o
            side[start + (k * (stop - start)) // n].append(f)

    dsp = cfg.get("dsp", 2)
    for P in range(8):
        fs = dma(P + 2) if P >= 1 else []
        for k, f in enumerate(fs):
            side[P * PM + 1 + dsp * k].append(f)

    if g == 1:
        A0 = T0
        ops = [f"s_mov_b64 exec, s[{S_E7}:{S_E7 + 1}]",
               "v_lshlrev_b32 v8, 3, v0",
               f"v_add_u32 v9, {CSPL}, v8"]
        for w in range(8):
            ops.append(lambda w=w: p.i(f"ds_read_b64 {vr(A0 + 2 * w, 2)}, v9 offset:{512 * w}", tag="rA"))
        ops.append(lambda: p.i(f"ds_read_b64 v[4:5], v9 offset:{STT - CSPL}", tag="rA"))
        ops.append("s_mov_b64 exec, -1")
        side[0].append(lambda: [(p.i(o) if isinstance(o, str) else o()) for o in ops])

        def pubA():
            p.wait(lg="rA")
            p.i(f"s_mov_b64 exec, s[{S_E7}:{S_E7 + 1}]")
            for a, b in ((0, 2), (4, 6), (8, 10), (12, 14), (0, 4), (8, 12), (0, 8)):
                p.i(f"v_add_f32 v{A0 + a}, v{A0 + a}, v{A0 + b}")
                p.i(f"v_add_f32 v{A0 + a + 1}, v{A0 + a + 1}, v{A0 + b + 1}")
            p.i("s_lshl_b32 s12, s7, 13")
            p.i("s_lshl_b32 s13, s6, 9")
            p.i("s_add_u32 s12, s12, s13")
            p.i(f"s_add_u32 s12, s12, {WS_CS:#x}")
            p.i(f"buffer_store_dwordx2 {vr(A0, 2)}, v8, {sr(SWS, 4)}, s12 offen sc1", tag="sA")
            p.i("s_lshl_b32 s12, s6, 10")
            p.i("s_lshl_b32 s13, s7, 6")
            p.i("s_add_u32 s12, s12, s13")
            p.i(f"s_add_u32 s12, s12, {WS_STATS:#x}")
            p.i(f"s_and_b64 exec, s[{S_E7}:{S_E7 + 1}], 0xff")
            p.i(f"buffer_store_dwordx2 v[4:5], v8, {sr(SWS, 4)}, s12 offen sc1", tag="sA")
            p.i("s_mov_b64 exec, -1")
        side[3].append(pubA)

        def sigA():
            p.wait(vm="sA")
            p.i("s_lshl_b32 s12, s6, 4")
            p.i("v_mov_b32 v8, 1")
            p.i(f"s_and_b64 exec, s[{S_E7}:{S_E7 + 1}], 1")
            p.i(f"buffer_atomic_add v8, off, {sr(SDBG, 4)}, s12")
            p.i("s_mov_b64 exec, -1")
        side[cfg.get("sigA", PM + PM // 2)].append(sigA)

    kvops = [lambda: p.wait(vm="kv")]
    KT, VT, ST_, RS, OB = T0 + 16, 228, 236, 240, 248
    for hi in range(2):
        def unp(dst, src, h=hi):
            return f"v_and_b32 v{dst}, 0xffff0000, v{src}" if h else f"v_lshlrev_b32 v{dst}, 16, v{src}"
        kvops += [f"v_lshlrev_b32 v{ST_}, 16, v{SKR + 2 * hi}", f"v_and_b32 v{ST_ + 1}, 0xffff0000, v{SKR + 2 * hi}",
                  f"v_lshlrev_b32 v{ST_ + 2}, 16, v{SKR + 2 * hi + 1}",
                  f"v_and_b32 v{ST_ + 3}, 0xffff0000, v{SKR + 2 * hi + 1}"]
        kvops += [unp(KT + i, KR + i) for i in range(11)]
        kvops += [unp(VT + i, VR_ + i) for i in range(8)]
        kvops += [f"v_mul_f32 v{RS + i}, v{KT + i}, v{ST_ + 3}" for i in range(8)]
        for j in (2, 1, 0):
            kvops += [f"v_fmac_f32 v{RS + i}, v{KT + i + 3 - j}, v{ST_ + j}" for i in range(8)]
        kvops += [f"v_mul_f32 v{RS + i}, v{RS + i}, v{VT + i}" for i in range(8)]
        ob = OB + 4 * hi
        kvops += [f"v_cvt_pk_bf16_f32 v{ob + k}, v{RS + 7 - 2 * k}, v{RS + 6 - 2 * k}" for k in range(4)]

        def kvw(hi=hi, ob=ob):
            p.i("s_mov_b32 exec_hi, 0xff")
            p.i(f"ds_write_b128 v{V_KVW}, {vr(ob, 4)} offset:{144 * hi}", tag="kvw")
            p.i("s_mov_b32 exec_hi, -1")
        kvops.append(kvw)
    kv0 = cfg.get("kv0", 4)
    kvend = 3 * PM - 2 * L - 4
    spread(kvops, kv0, kvend)

    U0 = T0 + 20

    def ur_rd():
        p.i(f"ds_read_b128 {vr(U0, 4)}, v{V_KVR}", tag="urr")
        p.i("s_mov_b64 exec, 0xffff")
        p.i(f"ds_read_b128 {vr(U0 + 4, 4)}, v{V_KVR} offset:{8 * 144}", tag="urr")
        p.i("s_mov_b64 exec, -1")

    def ur_st():
        p.wait(lg="urr")
        p.i(f"buffer_store_dwordx4 {vr(U0, 4)}, v{V_URO}, {sr(SWS, 4)}, 0 offen sc1", tag="pst")
        p.i("s_mov_b32 s12, 0x8000")
        p.i("s_mov_b64 exec, 0xffff")
        p.i(f"buffer_store_dwordx4 {vr(U0 + 4, 4)}, v{V_URO}, {sr(SWS, 4)}, s12 offen sc1", tag="pst")
        p.i("s_mov_b64 exec, -1")
    side[3 * PM + 1].append(ur_rd)
    side[3 * PM + 5].append(ur_st)
    if g == 1:
        for ct in range(5):
            def wd_rd(ct=ct):
                if ct == 0:
                    p.wait(vm="wd")
                for h in range(2):
                    p.i(f"ds_read_b64_tr_b16 {vr(T0 + 4 * ct + 2 * h, 2)}, v{V_WDR} offset:{32 * ct + 2560 * h}",
                        tag=f"wdr{ct}")

            def wd_st(ct=ct):
                p.wait(lg=f"wdr{ct}")
                p.i(f"s_mov_b64 exec, s[{S_WD}:{S_WD + 1}]")
                p.i(f"buffer_store_dwordx4 {vr(T0 + 4 * ct, 4)}, v{V_L16}, {sr(SWS, 4)}, s89 offen sc1", tag="pst")
                p.i("s_mov_b64 exec, -1")
                if ct < 4:
                    p.i(f"s_add_u32 s89, s89, {54 * 1024}")
            side[3 * PM + 7 + 3 * ct].append(wd_rd)
            side[3 * PM + 10 + 3 * ct].append(wd_st)

    pre_bar = {}
    post_bar = {}
    if fused:
        pre_bar.setdefault(5, []).append(lambda: p.wait(vm="pst"))
        if g == 1:
            def sigB():
                p.i("s_lshl_b32 s12, s6, 4")
                p.i("v_mov_b32 v8, 1")
                p.i(f"s_and_b64 exec, s[{S_E7}:{S_E7 + 1}], 1")
                p.i(f"buffer_atomic_add v8, off, {sr(SDBG, 4)}, s12 offset:4")
                p.i("s_mov_b64 exec, -1")
            post_bar.setdefault(5, []).append(sigB)

    if g == 1:
        PL = 4

        def poll_issue():
            p.i(f"s_and_b64 exec, s[{S_E7}:{S_E7 + 1}], 0xffff")
            p.i(f"buffer_load_dwordx2 {vr(PL, 2)}, v{V_L16}, {sr(SDBG, 4)}, 0 offen sc1", tag="poll")
            p.i("s_mov_b64 exec, -1")

        def poll_check(name, reg):
            p.wait(vm="poll")
            p.i(f"s_and_b64 exec, s[{S_E7}:{S_E7 + 1}], 0xffff")
            p.i("s_mov_b32 s12, 0x40000")
            p.fence()
            p.label(f"P1_{name}")
            p.i(f"v_cmp_ne_u32 vcc, 16, v{reg}")
            p.i("s_nop 1")
            p.i(f"s_cbranch_vccz P1_{name}_OK")
            st = p.fork_state()
            p.i("s_sub_u32 s12, s12, 1")
            p.i(f"s_cbranch_scc1 P1_{name}_OK")
            p.i(f"buffer_load_dwordx2 {vr(PL, 2)}, v{V_L16}, {sr(SDBG, 4)}, 0 offen sc1")
            p.wait(vm=0)
            p.i(f"s_branch P1_{name}")
            p.set_state(st)
            p.label(f"P1_{name}_OK")
            p.i("s_mov_b64 exec, -1")

        def payA():
            poll_check("A", PL)
            p.probe(3)
            p.i("s_lshl_b32 s12, s7, 13")
            p.i(f"s_add_u32 s12, s12, {WS_CS:#x}")
            p.i("s_add_u32 s13, s12, 4096")
            p.i(f"s_mov_b64 exec, s[{S_E7}:{S_E7 + 1}]")
            for kr in range(8):
                p.i(f"buffer_load_dwordx4 {vr(T0 + 4 * kr, 4)}, v{V_L16}, {sr(SWS, 4)}, s{12 + (kr >> 2)} offen "
                    f"offset:{1024 * (kr & 3)} sc1", tag="pay")
            p.i("s_lshl_b32 s12, s6, 10")
            p.i(f"s_add_u32 s12, s12, {WS_STATS:#x}")
            p.i(f"buffer_load_dwordx4 {vr(T0 + 32, 4)}, v{V_L16}, {sr(SWS, 4)}, s12 offen sc1", tag="pay")
            p.i("s_mov_b64 exec, -1")

        def useA():
            p.wait(vm="pay")
            p.i(f"s_mov_b64 exec, s[{S_E7}:{S_E7 + 1}]")
            for a, b in ((0, 4), (8, 12), (16, 20), (24, 28), (0, 8), (16, 24), (0, 16)):
                for e in range(4):
                    p.i(f"v_add_f32 v{T0 + a + e}, v{T0 + a + e}, v{T0 + b + e}")
            p.i(f"v_add_u32 v8, {CSX}, v{V_L16}")
            p.i(f"ds_write_b128 v8, {vr(T0, 4)}", tag="wA")
            p.i(f"ds_write_b128 v8, {vr(T0 + 32, 4)} offset:{STX - CSX}", tag="wA")
            p.i("s_mov_b64 exec, -1")
        side[cfg.get("pollA", 5 * PM + 16)].append(poll_issue)
        side[cfg.get("checkA", 6 * PM + 12)].append(payA)
        side[cfg.get("useA", 8 * PM - 2 * L - 6)].append(useA)
        pre_bar.setdefault(8, []).append(lambda: p.wait(lg="wA"))
        if fused:
            side[7 * PM + 4].append(poll_issue)
            pre_bar.setdefault(9, []).append(lambda: poll_check("B", PL + 1))

    C0 = -2.0 * math.log2(math.e) * math.sqrt(2.0 / math.pi)

    def cs_rd():
        ops = ["v_lshlrev_b32 v8, 4, v3", f"v_add_u32 v8, {CSX}, v8"]
        for t in range(NP):
            for m in range(2):
                ops.append(lambda m=m, t=t: p.i(f"ds_read_b128 {vr(CS + 16 * m + 4 * t, 4)}, v8 "
                                                f"offset:{512 * m + 64 * (4 * g + t)}", tag="csr"))
        return ops

    def st_rd():
        p.i("s_lshl_b32 s12, s10, 8")
        p.i(f"s_add_u32 s12, s12, {STX}")
        p.i("v_lshl_add_u32 v9, v2, 3, s12")
        for rt in range(2):
            p.i(f"ds_read_b64 {vr(STR + 2 * rt, 2)}, v9 offset:{128 * rt}", tag="str")

    def consts():
        p.wait(lg="str")
        for rt in range(2):
            m, den = STR + 2 * rt, STR + 2 * rt + 1
            nm, c1, c0, d2 = CON + 4 * rt, CON + 4 * rt + 1, CON + 4 * rt + 2, CON + 4 * rt + 3
            p.i(f"v_rcp_f32 v{c0}, v{den}")
            p.i(f"v_mul_f32 v{d2}, v{den}, v{den}")
            p.i(f"v_sub_f32 v{nm}, 0, v{m}")
            p.i(f"v_mul_f32 v{c1}, v{c0}, v{c0}")
            p.i(f"v_mul_f32 v{c0}, {f32(C0)}, v{c0}")
            p.i(f"v_mul_f32 v{c1}, {f32(0.044715)}, v{c1}")
            p.i(f"v_mul_f32 v{c1}, v{c1}, v{c0}")

    def epilogue_ops(t):
        ops = [lambda: p.wait(lg="csr")]
        vals = [(rt, r) for rt in range(2) for r in range(4)]
        G = lambda rt, r: acc(rt, 0, t) + r
        U = lambda rt, r: acc(rt, 1, t) + r
        A = lambda rt, r: TMP + rt * 4 + r
        K = lambda rt, k: CON + 4 * rt + k
        for rt, r in vals:
            ops.append(f"v_fma_f32 v{G(rt, r)}, v{K(rt, 0)}, v{CS + 4 * t + r}, v{G(rt, r)}")
        for rt, r in vals:
            ops.append(f"v_mul_f32 v{A(rt, r)}, v{G(rt, r)}, v{G(rt, r)}")
        for rt, r in vals:
            ops.append(f"v_fma_f32 v{A(rt, r)}, v{A(rt, r)}, v{K(rt, 1)}, v{K(rt, 2)}")
        for rt, r in vals:
            ops.append(f"v_mul_f32 v{A(rt, r)}, v{A(rt, r)}, v{G(rt, r)}")
        for rt, r in vals:
            ops.append(f"v_exp_f32 v{A(rt, r)}, v{A(rt, r)}")
            ops.append(f"v_fma_f32 v{U(rt, r)}, v{K(rt, 0)}, v{CS + 16 + 4 * t + r}, v{U(rt, r)}")
        for rt, r in vals:
            ops.append(f"v_fma_f32 v{A(rt, r)}, v{A(rt, r)}, v{K(rt, 3)}, v{K(rt, 3)}")
        for rt, r in vals:
            ops.append(f"v_rcp_f32 v{A(rt, r)}, v{A(rt, r)}")
            ops.append(f"v_mul_f32 v{G(rt, r)}, v{G(rt, r)}, v{U(rt, r)}")
        for rt, r in vals:
            ops.append(f"v_mul_f32 v{G(rt, r)}, v{G(rt, r)}, v{A(rt, r)}")
        o = OUT + (t & 1) * 4
        for rt in range(2):
            ops.append(f"v_cvt_pk_bf16_f32 v{o + 2 * rt}, v{G(rt, 0)}, v{G(rt, 1)}")
            ops.append(f"v_cvt_pk_bf16_f32 v{o + 2 * rt + 1}, v{G(rt, 2)}, v{G(rt, 3)}")
        ops.append(f"v_permlane16_swap_b32 v{o}, v{o + 2}")
        ops.append(f"v_permlane16_swap_b32 v{o + 1}, v{o + 3}")
        ops.append(lambda: p.i(f"buffer_store_dwordx4 {vr(o, 4)}, v{V_H}, {sr(SWS, 4)}, s{S_H0} offen "
                               f"offset:{512 * t} sc1", tag="hst"))
        return ops

    tail0 = 8 * PM
    side[tail0 + 1].append(st_rd)
    spread(cs_rd(), tail0 + 2, tail0 + 12)
    side[tail0 + 3].append(consts)
    for t in range(NP - 1):
        spread(epilogue_ops(t), tail0 + 16 * (t + 1) + 1, tail0 + 16 * (t + 2))

    hooks = cfg.get("hooks", {})
    for (kind, idx), fs in hooks.get(g, {}).items():
        for f in fs:
            if kind == "side":
                side[idx if idx >= 0 else 2 * N + idx].append(lambda f=f: f(p))
            else:
                post_bar.setdefault(idx, []).append(lambda f=f: f(p))

    barriered, xread = set(), set()

    def rd(n):
        ks, m, t = frags[n]
        P = ks >> 1
        if P not in barriered:
            barriered.add(P)
            for f in pre_bar.get(P, []):
                f()
            if P == 3:
                p.wait(lg="kvw")
            p.wait(vm=f"D{P}")
            p.i("s_barrier")
            if P == 0:
                p.probe(1)
            if P == cfg.get("pb", 4):
                p.probe(2)
            for f in post_bar.get(P, []):
                f()
        s = P % 3
        if ks not in xread:
            xread.add(ks)
            for rt in range(2):
                p.i(f"ds_read_b128 {vr(xreg(ks, rt), 4)}, v{VXA + 2 * s + (ks & 1)} offset:{2048 * rt}", tag=f"X{ks}")
        b = WF + (n % 8) * 4
        off = ((ks & 1) * 2 + m) * 7168 + 32 * t
        p.i(f"ds_read_b64_tr_b16 {vr(b, 2)}, v{VWA + s} offset:{off}", tag=f"F{n}")
        p.i(f"ds_read_b64_tr_b16 {vr(b + 2, 2)}, v{VWA + s} offset:{off + 3584}", tag=f"F{n}")
        assert len(p.lgq) <= 15, ("lgkm", n, len(p.lgq))

    for n in range(L):
        rd(n)
    seen = set()
    mi = 0
    for n in range(N):
        ks, m, t = frags[n]
        p.wait(lg=f"F{n}")
        if n + L < N:
            rd(n + L)
        b = WF + (n % 8) * 4
        for rt in range(2):
            a = acc(rt, m, t)
            cin = vr(a, 4) if (rt, m, t) in seen else "0"
            seen.add((rt, m, t))
            if not cfg.get("nomfma"):
                p.i(f"v_mfma_f32_16x16x32_bf16 {vr(a, 4)}, {vr(b, 4)}, {vr(xreg(ks, rt), 4)}, {cin}")
            for f in side[mi]:
                f()
            mi += 1
    p.probe(4)
    for o in epilogue_ops(NP - 1):
        if isinstance(o, str):
            p.i(o)
        else:
            o()


def gen_k1(cfg):
    p = Prog("k1")
    p.label("k1_kernel")
    p.i("s_cmp_ge_u32 s2, 256")
    p.i("s_cbranch_scc1 K1_END")
    p.prof = cfg.get("prof", False)
    p.probe_init()
    p.probe(0)
    load_kernargs(p)
    geometry(p)
    p.i("s_cmp_ge_u32 s3, 4")
    p.i("s_cbranch_scc1 K1_G1")
    st = p.fork_state()
    for g in range(2):
        if g:
            p.set_state(st)
            p.label("K1_G1")
            if cfg.get("prio1"):
                p.i(f"s_setprio {cfg['prio1']}")
        phase1(p, g, cfg)
        if p.prof:
            p.wait(vm=0)
        p.probe(5)
        p.probe_end(SWS, WS_PROF)
        if g:
            p.label("K1_END")
        p.i("s_endpgm")
    return p
```

```python
import math
from asmlib import Prog, vr, sr
from common import *

SX, SW, SWS, SDBG, SK_, SV_, SM_ = 44, 48, 52, 56, 60, 64, 68

ACC, WF, XR, CS, STR, CON, POLL = 16, 80, 112, 208, 240, 244, 252
TMP, OUT = 176, 192
NSPARE = 40


def acc(rt, tile):
    return ACC + (rt * 8 + tile) * 4


def xreg(ks, rt):
    return XR + ((ks >> 1) % 6) * 16 + ((ks & 1) * 2 + rt) * 4


def gemm(p, cfg):
    L = cfg.get("L", 5)
    p.c("---- GEMM1 role: s8=rg s9=cg")
    p.i("s_and_b32 s8, s5, 3")
    p.i("s_lshl_b32 s7, s7, 2")
    p.i("s_add_u32 s8, s8, s7")
    p.i("s_lshr_b32 s9, s5, 2")
    p.i("s_mul_i32 s6, s6, 7")
    p.i("s_add_u32 s9, s9, s6")
    p.i("s_lshl_b32 s10, s8, 8")
    p.i("s_lshl_b32 s11, s3, 5")
    p.i("s_add_u32 s10, s10, s11")
    p.i("v_and_b32 v2, 15, v0")
    p.i("v_lshrrev_b32 v3, 4, v0")
    p.i("v_add_u32 v1, s10, v2")
    p.i("v_mul_u32_u24 v4, 0x500, v1")
    p.i("v_lshl_add_u32 v4, v3, 4, v4")
    p.i("v_add_u32 v5, 0x5000, v4")
    p.i(f"v_lshlrev_b32 v14, 3, v1")
    p.i(f"v_add_u32 v14, {WS_STATS:#x}, v14")
    p.i("s_lshr_b32 s11, s3, 1")
    p.i("s_and_b32 s12, s11, 1")
    p.i("s_lshl_b32 s12, s12, 2")
    p.i("v_and_b32 v6, 1, v3")
    p.i("v_lshlrev_b32 v6, 1, v6")
    p.i("v_or_b32 v6, s12, v6")
    p.i("v_and_b32 v7, 7, v0")
    p.i("v_xor_b32 v6, v6, v7")
    p.i("v_lshrrev_b32 v7, 3, v0")
    p.i("v_mul_u32_u24 v7, 0xd80, v7")
    p.i("v_lshl_add_u32 v6, v6, 4, v7")
    p.i("s_mul_i32 s12, s11, 27648")
    p.i("s_lshl_b32 s13, s9, 7")
    p.i("s_add_u32 s12, s12, s13")
    p.i("v_add_u32 v6, s12, v6")
    p.i("s_and_b32 s13, s3, 1")
    p.i("s_lshl_b32 s12, s13, 12")
    p.i("s_lshl_b32 s11, s11, 10")
    p.i("s_add_u32 s12, s12, s11")
    p.i("v_bfe_u32 v7, v0, 2, 2")
    p.i("v_lshl_add_u32 v7, v3, 3, v7")
    p.i("v_lshlrev_b32 v7, 7, v7")
    p.i("v_and_b32 v8, 3, v0")
    p.i("v_lshl_add_u32 v7, v8, 3, v7")
    p.i("v_bfe_u32 v8, v0, 3, 2")
    p.i("v_lshlrev_b32 v8, 5, v8")
    for t in range(4):
        p.i(f"v_xor_b32 v{9 + t}, {t << 5:#x}, v8")
        p.i(f"v_add_u32 v{9 + t}, v{9 + t}, v7")
    p.i("v_lshlrev_b32 v13, 4, v0")
    p.i("s_lshl_b32 s14, s9, 9")
    p.i(f"s_add_u32 s14, s14, {WS_CS:#x}")
    p.i("v_lshl_add_u32 v15, v3, 4, s14")
    p.i("s_lshl_b32 s14, s8, 4")
    p.i("s_lshl_b32 s15, s3, 1")
    p.i("s_add_u32 s14, s14, s15")
    p.i("s_mul_i32 s14, s14, 54")
    p.i("s_lshl_b32 s15, s9, 1")
    p.i("s_add_u32 s14, s14, s15")
    p.i("s_lshl_b32 s14, s14, 10")
    p.i("s_add_u32 s15, s14, 55296")
    p.wait(lg=0)
    srd(p, SX, P_X, X_BYTES)
    p.i("s_cmp_eq_u32 s13, 0")
    p.i(f"s_cselect_b32 s{SW}, s{P_WG}, s{P_WU}")
    p.i(f"s_cselect_b32 s{SW + 1}, s{P_WG + 1}, s{P_WU + 1}")
    p.i(f"s_and_b32 s{SW + 1}, s{SW + 1}, 0xffff")
    p.i(f"s_mov_b32 s{SW + 2}, {W_BYTES:#x}")
    p.i(f"s_mov_b32 s{SW + 3}, 0x20000")

    def ld_w(ks):
        if cfg.get("now"):
            return
        p.i(f"s_add_u32 m0, s12, {ks * 8192:#x}")
        p.i(f"s_mov_b32 s11, {ks * 110592:#x}")
        p.i(f"buffer_load_dwordx4 v6, {sr(SW, 4)}, s11 offen lds", tag=f"W{ks >> 1}")

    def ld_x(ks, rt):
        if cfg.get("nox"):
            return
        p.i(f"buffer_load_dwordx4 {vr(xreg(ks, rt), 4)}, v{4 + rt}, {sr(SX, 4)}, 0 offen offset:{64 * ks}",
            tag=f"X{ks >> 1}")

    def pair_loads(P):
        return [lambda: ld_w(2 * P), lambda: ld_w(2 * P + 1),
                lambda: ld_x(2 * P, 0), lambda: ld_x(2 * P + 1, 0),
                lambda: ld_x(2 * P, 1), lambda: ld_x(2 * P + 1, 1)]

    npro = cfg.get("npro", 3)
    for P in range(npro):
        for f in pair_loads(P):
            f()
    srd(p, SWS, P_WS, WS_SIZE)
    srd(p, SDBG, P_DBG, 256)

    TAILK = 12
    frags = [(ks, m, t) for ks in range(TAILK) for m in range(2) for t in range(4)]
    frags += [(ks, m, t) for t in range(4) for ks in range(TAILK, 20) for m in range(2)]
    N = len(frags)
    side = {n: [] for n in range(2 * N + 1)}

    sched = cfg.get("sched", {3: 0, 4: 16, 5: 32, 6: 48, 7: 64, 8: 96, 9: 128})
    for P in range(npro, 10):
        at = sched[P]
        assert P < 6 or at >= (P - 6 + 1) * 32, "x ring slot not yet free"
        for k, f in enumerate(pair_loads(P)):
            side[at + 2 * k + 1].append(f)

    def poll_issue():
        p.i(f"buffer_load_dword v{POLL}, off, {sr(SDBG, 4)}, 0 sc1", tag="poll")

    def poll_check():
        p.wait(vm=0)
        p.i("s_mov_b32 s70, 0x40000")
        p.label("K1_POLL")
        p.i(f"v_readfirstlane_b32 s11, v{POLL}")
        p.i(f"s_cmp_eq_u32 s11, {NSPARE}")
        p.i("s_cbranch_scc1 K1_POLL_OK")
        p.i("s_sub_u32 s70, s70, 1")
        p.i("s_cbranch_scc1 K1_POLL_OK")
        p.i(f"buffer_load_dword v{POLL}, off, {sr(SDBG, 4)}, 0 sc1")
        p.wait(vm=0)
        p.i("s_branch K1_POLL")
        p.label("K1_POLL_OK")
        if not cfg.get("fine"):
            p.probe(3)
        for rt in range(2):
            p.i(f"buffer_load_dwordx2 {vr(STR + 2 * rt, 2)}, v14, {sr(SWS, 4)}, 0 offen offset:{128 * rt} sc1",
                tag="pay")
        for tile in range(8):
            p.i(f"buffer_load_dwordx4 {vr(CS + 4 * tile, 4)}, v15, {sr(SWS, 4)}, 0 offen offset:{64 * tile} sc1",
                tag="pay")

    side[cfg.get("poll_at", 150)].append(poll_issue)
    side[cfg.get("check_at", 190)].append(poll_check)

    C0 = -2.0 * math.log2(math.e) * math.sqrt(2.0 / math.pi)

    def consts():
        p.wait(vm="pay")
        ops = []
        for rt in range(2):
            m, den = STR + 2 * rt, STR + 2 * rt + 1
            nm, c1, c0, d2 = CON + 4 * rt, CON + 4 * rt + 1, CON + 4 * rt + 2, CON + 4 * rt + 3
            p.i(f"v_rcp_f32 v{c0}, v{den}")
            p.i(f"v_mul_f32 v{d2}, v{den}, v{den}")
            p.i(f"v_sub_f32 v{nm}, 0, v{m}")
            p.i(f"v_mul_f32 v{c1}, v{c0}, v{c0}")
            p.i(f"v_mul_f32 v{c0}, {f32(C0)}, v{c0}")
            p.i(f"v_mul_f32 v{c1}, {f32(0.044715)}, v{c1}")
            p.i(f"v_mul_f32 v{c1}, v{c1}, v{c0}")

    def epilogue_ops(t):
        ops = []
        vals = [(rt, r) for rt in range(2) for r in range(4)]
        G = lambda rt, r: acc(rt, t) + r
        U = lambda rt, r: acc(rt, 4 + t) + r
        A = lambda rt, r: TMP + rt * 4 + r
        K = lambda rt, k: CON + 4 * rt + k
        for rt, r in vals:
            ops.append(f"v_fma_f32 v{G(rt, r)}, v{K(rt, 0)}, v{CS + 4 * t + r}, v{G(rt, r)}")
        for rt, r in vals:
            ops.append(f"v_fma_f32 v{U(rt, r)}, v{K(rt, 0)}, v{CS + 16 + 4 * t + r}, v{U(rt, r)}")
        for rt, r in vals:
            ops.append(f"v_mul_f32 v{A(rt, r)}, v{G(rt, r)}, v{G(rt, r)}")
        for rt, r in vals:
            ops.append(f"v_fma_f32 v{A(rt, r)}, v{A(rt, r)}, v{K(rt, 1)}, v{K(rt, 2)}")
        for rt, r in vals:
            ops.append(f"v_mul_f32 v{A(rt, r)}, v{A(rt, r)}, v{G(rt, r)}")
        for rt, r in vals:
            ops.append(f"v_exp_f32 v{A(rt, r)}, v{A(rt, r)}")
            ops.append(f"v_mul_f32 v{G(rt, r)}, v{G(rt, r)}, v{U(rt, r)}")
        for rt, r in vals:
            ops.append(f"v_fma_f32 v{A(rt, r)}, v{A(rt, r)}, v{K(rt, 3)}, v{K(rt, 3)}")
        for rt, r in vals:
            ops.append(f"v_rcp_f32 v{A(rt, r)}, v{A(rt, r)}")
        for rt, r in vals:
            ops.append(f"v_mul_f32 v{G(rt, r)}, v{G(rt, r)}, v{A(rt, r)}")
        for rt in range(2):
            o = OUT + (t >> 1) * 8 + rt * 4 + 2 * (t & 1)
            ops.append(f"v_cvt_pk_bf16_f32 v{o}, v{G(rt, 0)}, v{G(rt, 1)}")
            ops.append(f"v_cvt_pk_bf16_f32 v{o + 1}, v{G(rt, 2)}, v{G(rt, 3)}")
        if t & 1:
            for rt in range(2):
                o = OUT + (t >> 1) * 8 + rt * 4
                ops.append(f"buffer_store_dwordx4 {vr(o, 4)}, v13, {sr(SWS, 4)}, s{14 + rt} offen "
                           f"offset:{1024 * (t >> 1)} sc1")
        return ops

    tail0 = TAILK * 16
    side[tail0 + 32 + 1].append(consts)
    for t in range(3):
        ops = epilogue_ops(t)
        start = tail0 + 32 * (t + 1) + 2
        span = 29
        for k, o in enumerate(ops):
            side[start + (k * span) // len(ops)].append(lambda o=o: p.i(o))

    cur = [0, 0, 0, 0]
    barriered = set()

    def rd(n):
        ks, m, t = frags[n]
        P = ks >> 1
        if P not in barriered:
            barriered.add(P)
            p.wait(vm=f"W{P}")
            p.i("s_barrier")
            if P == 0 and cfg.get("cyc", False):
                p.probe(0)
            if cfg.get("fine"):
                if P in cfg["fine"]:
                    p.probe(1 + cfg["fine"].index(P))
            else:
                if P == 0:
                    p.probe(1, cfg.get("cyc", False))
                if P == 5:
                    p.probe(2)
        base = 0 if ks < 8 else (8 if ks < TAILK else TAILK)
        if cur[t] != base:
            p.i(f"v_add_u32 v{9 + t}, {(base - cur[t]) * 8192:#x}, v{9 + t}")
            cur[t] = base
        b = WF + (n % 8) * 4
        off = (ks - base) * 8192 + m * 4096
        p.i(f"ds_read_b64_tr_b16 {vr(b, 2)}, v{9 + t} offset:{off}", tag=f"F{n}")
        p.i(f"ds_read_b64_tr_b16 {vr(b + 2, 2)}, v{9 + t} offset:{off + 512}", tag=f"F{n}")

    for n in range(L):
        rd(n)
    seen = set()
    mi = 0
    for n in range(N):
        ks, m, t = frags[n]
        if n + L < N:
            rd(n + L)
        p.wait(vm=f"X{ks >> 1}", lg=f"F{n}")
        b = WF + (n % 8) * 4
        for rt in range(2):
            a = acc(rt, 4 * m + t)
            cin = vr(a, 4) if (rt, m, t) in seen else "0"
            seen.add((rt, m, t))
            if not cfg.get("nomfma"):
                p.i(f"v_mfma_f32_16x16x32_bf16 {vr(a, 4)}, {vr(b, 4)}, {vr(xreg(ks, rt), 4)}, {cin}")
            for f in side[mi]:
                f()
            mi += 1
    if not cfg.get("fine"):
        p.probe(4)
    if cfg.get("cyc", False):
        p.probe(3, True)
    for o in epilogue_ops(3):
        p.i(o)
    if p.prof:
        p.wait(vm=0)
    p.probe(5)
    p.probe_end(SWS, WS_PROF)
    p.i("s_endpgm")


def stats_task(p, data, tmp, voff_reg):
    for d in range(40):
        p.i(f"v_lshlrev_b32 v{tmp + d}, 16, v{data + d}")
        p.i(f"v_and_b32 v{data + d}, 0xffff0000, v{data + d}")
    allv = [tmp + d for d in range(40)] + [data + d for d in range(40)]
    for k in range(4):
        p.i(f"v_add_f32 v{8 + k}, v{allv[k]}, v{allv[4 + k]}")
    for n in range(8, 80):
        p.i(f"v_add_f32 v{8 + (n & 3)}, v{8 + (n & 3)}, v{allv[n]}")

    def reduce8():
        p.i("v_add_f32 v8, v8, v9")
        p.i("v_add_f32 v10, v10, v11")
        p.i("v_add_f32 v8, v8, v10")
        p.i("v_add_f32_dpp v8, v8, v8 quad_perm:[1,0,3,2] row_mask:0xf bank_mask:0xf")
        p.i("v_add_f32_dpp v8, v8, v8 quad_perm:[2,3,0,1] row_mask:0xf bank_mask:0xf")
        p.i("v_add_f32_dpp v8, v8, v8 row_half_mirror row_mask:0xf bank_mask:0xf")
        p.i(f"v_mul_f32 v8, {f32(1.0 / 640)}, v8")

    reduce8()
    p.i("v_mov_b32 v12, v8")
    for n in range(80):
        p.i(f"v_sub_f32 v{allv[n]}, v{allv[n]}, v12")
    for k in range(4):
        p.i(f"v_mul_f32 v{8 + k}, v{allv[k]}, v{allv[k]}")
    for n in range(4, 80):
        p.i(f"v_fmac_f32 v{8 + (n & 3)}, v{allv[n]}, v{allv[n]}")
    reduce8()
    p.i("v_cvt_pk_bf16_f32 v8, v12, v8")
    p.i("v_and_b32 v9, 0xffff0000, v8")
    p.i(f"v_add_f32 v9, {f32(1e-5)}, v9")
    p.i("v_cvt_pk_bf16_f32 v9, v9, v9")
    p.i("v_and_b32 v9, 0xffff0000, v9")
    p.i("v_sqrt_f32 v9, v9")
    p.i("v_lshlrev_b32 v8, 16, v8")
    p.i("v_cvt_pk_bf16_f32 v9, v9, v9")
    p.i("v_and_b32 v9, 0xffff0000, v9")
    p.i(f"buffer_store_dwordx2 v[8:9], v{voff_reg}, {sr(SWS, 4)}, 0 offen sc1")


def spare(p, cfg):
    p.label("K1_SPARE")
    p.hist = []
    p.c("---- spare role: s8 = sp, s9 = gw")
    p.i("s_lshl_b32 s8, s4, 2")
    p.i("s_add_u32 s8, s8, s5")
    p.i("s_sub_u32 s8, s8, 28")
    p.i("s_lshl_b32 s9, s4, 3")
    p.i("s_add_u32 s9, s9, s5")
    p.i("s_sub_u32 s9, s9, 48")
    p.i("s_cmp_eq_u32 s6, 3")
    p.i("s_cselect_b32 s8, s9, s8")
    p.i("s_lshl_b32 s9, s8, 3")
    p.i("s_add_u32 s9, s9, s3")
    p.i("v_lshrrev_b32 v2, 3, v0")
    p.i("v_and_b32 v3, 7, v0")
    p.i("v_lshlrev_b32 v13, 4, v0")
    p.i("s_mul_hi_u32 s10, s8, 0x1999999a")
    p.i("s_mul_i32 s11, s10, 10")
    p.i("s_sub_u32 s11, s8, s11")
    p.i("s_lshl_b32 s10, s10, 9")
    p.i("s_lshl_b32 s12, s3, 6")
    p.i("s_add_u32 s10, s10, s12")
    p.i("v_lshl_add_u32 v4, v2, 3, s10")
    p.i("v_mul_u32_u24 v5, 0x500, v4")
    p.i("v_lshl_add_u32 v5, v3, 4, v5")
    p.i("s_lshl_b32 s12, s11, 7")
    p.i("v_add_u32 v5, s12, v5")
    p.i("v_lshlrev_b32 v14, 15, v3")
    p.i("s_lshl_b32 s12, s11, 18")
    p.i(f"s_add_u32 s12, s12, {WS_UR + 4080:#x}")
    p.i("v_add_u32 v14, s12, v14")
    p.i("v_lshlrev_b32 v4, 1, v4")
    p.i("v_sub_u32 v14, v14, v4")
    p.i("v_lshlrev_b32 v15, 6, v3")
    p.i("s_lshl_b32 s12, s11, 9")
    p.i("v_add_u32 v15, s12, v15")
    p.i("v_mul_u32_u24 v6, 0x500, v2")
    p.i("v_lshl_add_u32 v6, v3, 4, v6")
    p.wait(lg=0)
    srd(p, SX, P_X, X_BYTES)
    srd(p, SWS, P_WS, WS_SIZE)
    srd(p, SDBG, P_DBG, 256)
    srd(p, SK_, P_K, X_BYTES)
    srd(p, SV_, P_V, X_BYTES)
    srd(p, SM_, P_SK, 640 * 8)
    KR, VR_, SKR = 144, 188, 220

    def kv_loads():
        for i in range(11):
            p.i(f"v_add_u32 v7, {((i - 3) * 1280) & 0xffffffff:#x}, v5")
            p.i(f"buffer_load_dwordx4 {vr(KR + 4 * i, 4)}, v7, {sr(SK_, 4)}, 0 offen", tag="kv")
        for i in range(8):
            p.i(f"v_add_u32 v7, {i * 1280:#x}, v5")
            p.i(f"buffer_load_dwordx4 {vr(VR_ + 4 * i, 4)}, v7, {sr(SV_, 4)}, 0 offen", tag="kv")
        for i in range(4):
            p.i(f"buffer_load_dwordx4 {vr(SKR + 4 * i, 4)}, v15, {sr(SM_, 4)}, 0 offen offset:{16 * i}", tag="kv")

    def stats_loads(data, stask, vo, tag):
        p.i(f"s_mul_i32 s12, s{stask}, 10240")
        for t in range(10):
            p.i(f"buffer_load_dwordx4 {vr(data + 4 * t, 4)}, v6, {sr(SX, 4)}, s12 offen offset:{128 * t}", tag=tag)
        p.i(f"s_lshl_b32 s12, s{stask}, 6")
        p.i(f"s_add_u32 s12, s12, {WS_STATS:#x}")
        p.i(f"v_lshl_add_u32 v{vo}, v2, 3, s12")

    def signal():
        p.probe(1)
        p.wait(vm=0)
        p.i("s_barrier")
        p.probe(2)
        p.i("s_cmp_lg_u32 s3, 0")
        p.i(f"s_cbranch_scc1 K1_LATE")
        p.i("v_mov_b32 v8, 1")
        p.i("s_mov_b64 exec, 1")
        p.i(f"buffer_atomic_add v8, off, {sr(SDBG, 4)}, 0")
        p.i("s_mov_b64 exec, -1")
        p.vmq = []
        p.i("s_branch K1_LATE")

    p.i("s_cmp_ge_u32 s8, 27")
    p.i("s_cbranch_scc1 K1_STATS")
    st0 = p.fork_state()
    p.c("colsum path")
    p.i("s_add_u32 s13, s9, 208")
    p.i("s_cmp_ge_u32 s8, 6")
    p.i("s_cbranch_scc1 K1_CS_NOST")
    stats_loads(104, 13, 1, "stA")
    p.label("K1_CS_NOST")
    p.i("s_and_b32 s13, s3, 1")
    p.i("s_cmp_eq_u32 s13, 0")
    p.i(f"s_cselect_b32 s{SW}, s{P_WG}, s{P_WU}")
    p.i(f"s_cselect_b32 s{SW + 1}, s{P_WG + 1}, s{P_WU + 1}")
    p.i(f"s_and_b32 s{SW + 1}, s{SW + 1}, 0xffff")
    p.i(f"s_mov_b32 s{SW + 2}, {W_BYTES:#x}")
    p.i(f"s_mov_b32 s{SW + 3}, 0x20000")
    p.i("v_mul_u32_u24 v7, 0xd80, v2")
    p.i("v_lshl_add_u32 v7, v3, 4, v7")
    p.i("s_lshr_b32 s12, s3, 1")
    p.i(f"s_mul_i32 s12, s12, {160 * 3456}")
    p.i("s_lshl_b32 s13, s8, 7")
    p.i("s_add_u32 s12, s12, s13")
    p.i("v_add_u32 v4, s12, v7")
    for i in range(20):
        p.i(f"s_mov_b32 s12, {i * 8 * 3456:#x}")
        p.i(f"buffer_load_dwordx4 {vr(16 + 4 * i, 4)}, v4, {sr(SW, 4)}, s12 offen", tag=f"cs{i}")
    kv_loads()
    for i in range(20):
        p.wait(vm=f"cs{i}")
        for d in range(4):
            r = 16 + 4 * i + d
            if i == 0:
                p.i(f"v_lshlrev_b32 v{96 + 2 * d}, 16, v{r}")
                p.i(f"v_and_b32 v{97 + 2 * d}, 0xffff0000, v{r}")
            else:
                p.i(f"v_lshlrev_b32 v{8 + (d & 1) * 2}, 16, v{r}")
                p.i(f"v_and_b32 v{9 + (d & 1) * 2}, 0xffff0000, v{r}")
                p.i(f"v_add_f32 v{96 + 2 * d}, v{96 + 2 * d}, v{8 + (d & 1) * 2}")
                p.i(f"v_add_f32 v{97 + 2 * d}, v{97 + 2 * d}, v{9 + (d & 1) * 2}")
    p.i("s_lshl_b32 s12, s3, 11")
    p.i("v_lshl_add_u32 v7, v0, 5, s12")
    p.i("ds_write_b128 v7, v[96:99]")
    p.i("ds_write_b128 v7, v[100:103] offset:16")
    p.wait(lg=0)
    p.i("s_barrier")
    p.i("s_cmp_ge_u32 s3, 2")
    p.i("s_cbranch_scc1 K1_CS_NORED")
    p.i("s_lshl_b32 s12, s3, 11")
    p.i("v_lshl_add_u32 v7, v0, 2, s12")
    for kq in range(4):
        for rl in range(8):
            p.i(f"ds_read_b32 v{16 + kq * 8 + rl}, v7 offset:{kq * 4096 + rl * 256}", tag="red")
    p.wait(lg=0)
    for n in range(16):
        p.i(f"v_add_f32 v{16 + n}, v{16 + n}, v{32 + n}")
    for n in range(8):
        p.i(f"v_add_f32 v{16 + n}, v{16 + n}, v{24 + n}")
    for n in range(4):
        p.i(f"v_add_f32 v{16 + n}, v{16 + n}, v{20 + n}")
    p.i("v_add_f32 v16, v16, v18")
    p.i("v_add_f32 v17, v17, v19")
    p.i("v_add_f32 v16, v16, v17")
    p.i("s_lshl_b32 s12, s8, 9")
    p.i("s_lshl_b32 s13, s3, 8")
    p.i("s_add_u32 s12, s12, s13")
    p.i(f"s_add_u32 s12, s12, {WS_CS:#x}")
    p.i("v_lshlrev_b32 v7, 2, v0")
    p.i(f"buffer_store_dword v16, v7, {sr(SWS, 4)}, s12 offen sc1")
    p.label("K1_CS_NORED")
    p.fence()
    p.i("s_cmp_ge_u32 s8, 6")
    p.i("s_cbranch_scc1 K1_CS_NOST2")
    stats_task(p, 104, 16, 1)
    p.label("K1_CS_NOST2")
    p.fence()
    signal()
    p.label("K1_STATS")
    p.set_state(st0)
    p.c("stats path")
    p.i("s_sub_u32 s13, s9, 216")
    stats_loads(16, 13, 1, "stA")
    p.i("s_add_u32 s13, s13, 104")
    stats_loads(56, 13, 4, "stB")
    kv_loads()
    p.wait(vm="stA")
    stats_task(p, 16, 96, 1)
    p.wait(vm="stB")
    stats_task(p, 56, 96, 4)
    signal()
    p.label("K1_LATE")
    p.hist = []
    p.vmq, p.lgq = [], []
    p.c("late work: Wd re-layout loads first")
    srd(p, SM_, P_WD, W_BYTES)
    p.i("s_lshl_b32 s14, s3, 13")
    p.i("s_add_u32 s14, s14, 16384")

    def wd_unit_loads(i):
        ss, sc = 72 + 2 * i, 73 + 2 * i
        p.i(f"s_mul_hi_u32 s{ss}, s13, 0x1999999a")
        p.i(f"s_mul_i32 s12, s{ss}, 10")
        p.i(f"s_sub_u32 s{sc}, s13, s12")
        p.i(f"s_mul_i32 s12, s{ss}, {32 * 1280}")
        p.i(f"s_lshl_b32 s15, s{sc}, 7")
        p.i("s_add_u32 s12, s12, s15")
        for n in range(4):
            p.i(f"s_add_u32 m0, s14, {i * 4096 + n * 1024}")
            p.i(f"s_add_u32 s15, s12, {n * 8 * 1280}")
            p.i(f"buffer_load_dwordx4 v6, {sr(SM_, 4)}, s15 offen lds", tag=f"wd{i}")

    p.i("s_add_u32 s13, s9, 320")
    p.i("s_cmp_ge_u32 s13, 540")
    p.i("s_cbranch_scc1 K1_WD_NO1")
    wd_unit_loads(1)
    p.label("K1_WD_NO1")
    p.i("s_mov_b32 s13, s9")
    wd_unit_loads(0)
    p.i("v_mov_b32 v8, -1")
    p.i("v_mov_b32 v9, -1")
    p.i("v_mov_b32 v10, -1")
    p.i("v_mov_b32 v11, -1")
    p.i("s_lshl_b32 s12, s9, 13")
    p.i(f"s_add_u32 s12, s12, {WS_YT:#x}")
    p.i("s_add_u32 s13, s12, 4096")
    for n in range(8):
        p.i(f"buffer_store_dwordx4 v[8:11], v13, {sr(SWS, 4)}, s{12 + (n >> 2)} offen offset:{(n & 3) * 1024} sc1")
    p.c("kv -> UR")
    for e in range(8):
        d, hi = e >> 1, e & 1
        kt, vt, st_ = 16, 28, 36
        ob = 40 + (e & 1) * 4
        rs = 48

        def unp(dst, src):
            if hi:
                p.i(f"v_and_b32 v{dst}, 0xffff0000, v{src}")
            else:
                p.i(f"v_lshlrev_b32 v{dst}, 16, v{src}")
        p.i(f"v_lshlrev_b32 v{st_}, 16, v{SKR + 2 * e}")
        p.i(f"v_and_b32 v{st_ + 1}, 0xffff0000, v{SKR + 2 * e}")
        p.i(f"v_lshlrev_b32 v{st_ + 2}, 16, v{SKR + 2 * e + 1}")
        p.i(f"v_and_b32 v{st_ + 3}, 0xffff0000, v{SKR + 2 * e + 1}")
        for i in range(11):
            unp(kt + i, KR + 4 * i + d)
        for i in range(8):
            unp(vt + i, VR_ + 4 * i + d)
        for i in range(8):
            p.i(f"v_mul_f32 v{rs + i}, v{kt + i}, v{st_ + 3}")
        for j in (2, 1, 0):
            for i in range(8):
                p.i(f"v_fmac_f32 v{rs + i}, v{kt + i + 3 - j}, v{st_ + j}")
        for i in range(8):
            p.i(f"v_mul_f32 v{rs + i}, v{rs + i}, v{vt + i}")
        for k in range(4):
            p.i(f"v_cvt_pk_bf16_f32 v{ob + k}, v{rs + 7 - 2 * k}, v{rs + 6 - 2 * k}")
        p.i(f"s_mov_b32 s12, {e * 4096}")
        p.i(f"buffer_store_dwordx4 {vr(ob, 4)}, v14, {sr(SWS, 4)}, s12 offen sc1")
    p.c("Wd frags")
    p.probe(3)
    p.i("v_lshrrev_b32 v2, 2, v0")
    p.i("v_lshlrev_b32 v2, 7, v2")
    p.i("v_and_b32 v3, 3, v0")
    p.i("v_lshl_add_u32 v2, v3, 3, v2")
    p.i("v_add_u32 v2, s14, v2")
    p.wait(vm="wd0")

    def wd_unit_out(i):
        ss, sc = 72 + 2 * i, 73 + 2 * i
        for t in range(4):
            for h in range(2):
                p.i(f"ds_read_b64_tr_b16 {vr(64 + 4 * t + 2 * h, 2)}, v2 offset:{i * 4096 + h * 2048 + 32 * t}",
                    tag=f"t{t}")
        p.i(f"s_mul_i32 s12, s{sc}, {4 * 54}")
        p.i(f"s_add_u32 s12, s12, s{ss}")
        p.i("s_lshl_b32 s12, s12, 10")
        p.i(f"s_add_u32 s12, s12, {WS_WD:#x}")
        for t in range(4):
            p.wait(lg=f"t{t}")
            p.i(f"buffer_store_dwordx4 {vr(64 + 4 * t, 4)}, v13, {sr(SWS, 4)}, s12 offen sc1")
            if t < 3:
                p.i(f"s_add_u32 s12, s12, {54 * 1024}")

    wd_unit_out(0)
    p.i("s_add_u32 s13, s9, 320")
    p.i("s_cmp_ge_u32 s13, 540")
    p.i("s_cbranch_scc1 K1_END0")
    p.i("s_nop 1")
    wd_unit_out(1)
    p.label("K1_END0")
    if p.prof:
        p.wait(vm=0)
    p.probe(5)
    p.probe_end(SWS, WS_PROF)
    p.label("K1_END")
    p.i("s_endpgm")


def gen_k1(cfg):
    p = Prog("k1")
    p.label("k1_kernel")
    p.i("s_cmp_ge_u32 s2, 256")
    p.i("s_cbranch_scc1 K1_END")
    p.prof = cfg.get("prof", False)
    p.probe_init()
    p.probe(0)
    load_kernargs(p)
    p.i("v_lshrrev_b32 v1, 6, v0")
    p.i("v_and_b32 v0, 63, v0")
    p.i("v_readfirstlane_b32 s3, v1")
    p.i("s_and_b32 s4, s2, 7")
    p.i("s_lshr_b32 s5, s2, 3")
    p.i("s_lshr_b32 s6, s4, 1")
    p.i("s_and_b32 s7, s4, 1")
    p.i("s_cmp_eq_u32 s6, 3")
    p.i("s_cselect_b32 s8, 24, 28")
    p.i("s_cmp_ge_u32 s5, s8")
    p.i("s_cbranch_scc1 K1_SPARE")
    st = p.fork_state()
    gemm(p, cfg)
    p.set_state(st)
    spare(p, cfg)
    return p
```

```python
from asmlib import Prog, vr, sr
from common import *

SWS, SX, SH, SOUT = 44, 48, 52, 56

CPY = 4160
URO = 4 * CPY
SLOT = URO + 4608
XB = 3 * SLOT
RED = XB + 4 * 3072
PB = RED + 60 * 1024
LDS2 = PB + 20 * 1024

NSTEP = 14


def gemm2(p, cfg):
    NST = cfg.get("nst", 4)
    ACC, STG = 16, 96

    def acc(r, ct):
        return ACC + (r * 5 + ct) * 4

    def hreg(k, r):
        return STG + (k % NST) * 36 + 4 * r

    def wreg(k, ct):
        return STG + (k % NST) * 36 + 16 + 4 * ct

    p.c("---- GEMM2 role (s3 = g)")
    p.i("s_mul_i32 s8, s3, 14")
    p.i("s_sub_u32 s9, s3, 1")
    p.i("s_max_i32 s9, s9, 0")
    p.i("s_sub_u32 s8, s8, s9")
    p.i("v_lshlrev_b32 v13, 4, v0")
    for r in range(4):
        p.i(f"s_add_u32 s9, s3, {r}")
        p.i("s_and_b32 s9, s9, 3")
        p.i("s_lshl_b32 s10, s6, 2")
        p.i("s_add_u32 s10, s10, s9")
        p.i("s_mul_i32 s10, s10, 54")
        p.i("s_add_u32 s10, s10, s8")
        p.i("s_lshl_b32 s10, s10, 10")
        p.i(f"v_add_u32 v{4 + r}, s10, v13")
        if r:
            p.i("s_mul_i32 s9, s9, 15360")
            p.i(f"s_add_u32 s9, s9, {RED + (r - 1) * 5120}")
            p.i(f"v_add_u32 v{r}, s9, v13")
    p.i("s_mul_i32 s9, s7, 270")
    p.i("s_add_u32 s9, s9, s8")
    p.i("s_lshl_b32 s9, s9, 10")
    p.i(f"s_add_u32 s9, s9, {WS_WD:#x}")
    p.i("v_add_u32 v8, s9, v13")
    for ct in range(1, 5):
        p.i(f"v_add_u32 v{8 + ct}, {ct * 54 * 1024:#x}, v8")
    for k in range(1, 4):
        p.i(f"s_mov_b32 s{72 + k}, {k * 4096}")
    p.wait(lg=0)
    srd(p, SWS, P_WS, WS_SIZE)

    def so(k):
        return "0" if k < 4 else f"s{72 + (k >> 2)}"

    def ld_h(k, r):
        p.i(f"buffer_load_dwordx4 {vr(hreg(k, r), 4)}, v{4 + r}, {sr(SWS, 4)}, {so(k)} offen offset:{(k & 3) * 1024}",
            tag=f"H{k}_{r}")

    def ld_w(k, ct):
        p.i(f"buffer_load_dwordx4 {vr(wreg(k, ct), 4)}, v{8 + ct}, {sr(SWS, 4)}, {so(k)} offen offset:{(k & 3) * 1024}",
            tag=f"W{k}_{ct}")

    def loads(k):
        for ct in range(4):
            ld_w(k, ct)
        for r in range(4):
            ld_h(k, r)
        ld_w(k, 4)

    p.i("s_cmp_ge_u32 s3, 2")
    p.i("s_cbranch_scc1 K2_G_SK0")
    loads(0)
    p.label("K2_G_SK0")
    for k in range(1, NST):
        loads(k)
    p.i("s_cmp_lt_u32 s3, 2")
    p.i("s_cbranch_scc1 K2_G_SK1")
    st = p.fork_state()
    p.vmq = []
    loads(NST)
    p.set_state(st)
    p.label("K2_G_SK1")
    for n in range(80):
        p.i(f"v_mov_b32 v{ACC + n}, 0")
    srd(p, SOUT, P_OUT, X_BYTES)
    p.i("s_mul_i32 s9, s3, 15360")
    p.i(f"s_add_u32 s9, s9, {RED}")
    p.i("v_add_u32 v14, s9, v13")
    p.i("v_lshrrev_b32 v240, 4, v0")
    p.i("v_and_b32 v241, 15, v0")
    p.i("v_lshlrev_b32 v15, 10, v240")
    p.i("v_lshl_add_u32 v15, v241, 4, v15")
    p.i("s_lshl_b32 s9, s3, 8")
    p.i(f"s_add_u32 s9, s9, {PB}")
    p.i("v_add_u32 v15, s9, v15")
    p.i("s_lshl_b32 s9, s6, 6")
    p.i("s_lshl_b32 s10, s3, 4")
    p.i("s_add_u32 s9, s9, s10")
    p.i("v_add_u32 v241, s9, v241")
    p.i("v_mul_u32_u24 v241, 0x500, v241")
    p.i("v_lshl_add_u32 v241, v240, 3, v241")
    p.i("s_mul_i32 s9, s7, 160")
    p.i("v_add_u32 v241, s9, v241")
    p.i("s_barrier")
    p.probe(1)
    p.i("s_cmp_ge_u32 s3, 2")
    p.i("s_cbranch_scc1 K2_G_BLK1")

    def mf(k, r, ct):
        p.wait(vm=f"W{k}_{ct}")
        p.wait(vm=f"H{k}_{r}")
        a = acc(r, ct)
        if cfg.get("nomfma"):
            return
        p.i(f"v_mfma_f32_16x16x32_bf16 {vr(a, 4)}, {vr(wreg(k, ct), 4)}, {vr(hreg(k, r), 4)}, {vr(a, 4)}")

    for k in range(NSTEP - 1):
        if k == 1:
            p.label("K2_G_BLK1")
            p.hist = []
        nxt = k + NST < NSTEP
        if k == 7:
            p.probe(2)
        for ct in range(5):
            for r in range(4):
                mf(k, r, ct)
                if ct == 4 and nxt:
                    ld_h(k + NST, r)
            if nxt:
                ld_w(k + NST, ct)
    k = NSTEP - 1
    order = [(r, ct) for r in (1, 2, 3, 0) for ct in range(5)]
    for n, (r, ct) in enumerate(order):
        mf(k, r, ct)
        if n >= 2 and n - 2 < 15:
            r2, c2 = order[n - 2]
            p.i(f"ds_write_b128 v{r2}, {vr(acc(r2, c2), 4)} offset:{c2 * 1024}")
    p.wait(lg=0)
    p.probe(3)
    p.i("s_barrier")
    p.probe(4)
    T = STG

    def rdp(ct):
        for s in range(3):
            p.i(f"ds_read_b128 {vr(T + ct * 16 + s * 4, 4)}, v14 offset:{(s * 5 + ct) * 1024}", tag=f"R{ct}")
        p.i(f"ds_read_b128 {vr(T + ct * 16 + 12, 4)}, v15 offset:{ct * 4096}", tag=f"R{ct}")

    for ct in range(3):
        rdp(ct)
    for ct in range(5):
        p.wait(lg=f"R{ct}")
        if ct + 3 < 5:
            rdp(ct + 3)
        b = T + ct * 16
        a = acc(0, ct)
        for h in (0, 2):
            p.i(f"v_pk_add_f32 {vr(b + h, 2)}, {vr(b + h, 2)}, {vr(b + 4 + h, 2)}")
            p.i(f"v_pk_add_f32 {vr(b + 8 + h, 2)}, {vr(b + 8 + h, 2)}, {vr(b + 12 + h, 2)}")
        for h in (0, 2):
            p.i(f"v_pk_add_f32 {vr(a + h, 2)}, {vr(a + h, 2)}, {vr(b + h, 2)}")
        for h in (0, 2):
            p.i(f"v_pk_add_f32 {vr(a + h, 2)}, {vr(a + h, 2)}, {vr(b + 8 + h, 2)}")
        p.i(f"v_cvt_pk_bf16_f32 v{b}, v{a}, v{a + 1}")
        p.i(f"v_cvt_pk_bf16_f32 v{b + 1}, v{a + 2}, v{a + 3}")
        p.i(f"buffer_store_dwordx2 {vr(b, 2)}, v241, {sr(SOUT, 4)}, 0 offen offset:{32 * ct} sc1")
    if p.prof:
        p.wait(vm=0)
    p.probe(5)
    p.probe_end(SWS, WS_PROF + 0x10000)
    p.i("s_endpgm")


VA_M, VA_C, VG_M, VG_C, VKV_M, VKV_C, VYT = 1, 2, 3, 4, 5, 6, 7
CACC = 16
KVT = 40
POOL0 = 56


def conv_main(p, cfg, accs, name):
    LA = cfg.get("cla", 8)
    areg = {a: CACC + 4 * k for k, a in enumerate(accs)}
    mfs = []
    for rc in range(8):
        for which in ("M", "C"):
            ns = [n for w_, n in accs if w_ == which]
            if not ns:
                continue
            if rc == 0:
                seq = [(n, I) for n in sorted(ns, reverse=True) for I in range(n + 1)]
            else:
                seq = [(n, I) for I in range(8) for n in sorted(ns, reverse=True) if n >= I]
            for n, I in seq:
                mfs.append(((which, n), ("A", which, 8 * I + rc), ("G", which, 8 * (n - I) + 7 - rc)))
    first, last, lastacc, firstacc = {}, {}, {}, {}
    for m, (a, fa, fb) in enumerate(mfs):
        for f in (fa, fb):
            first.setdefault(f, m)
            last[f] = m
        lastacc[a] = m
        firstacc.setdefault(a, m)
    order = sorted(first, key=lambda f: (first[f], f[0] != "A"))
    free = list(range(POOL0, 248, 4))
    slot = {}
    ptr = [0]

    def rd(f):
        b = free.pop(0)
        slot[f] = b
        kind, which, idx = f
        if kind == "A":
            v = VA_M if which == "M" else VA_C
            p.i(f"ds_read_b64 {vr(b, 2)}, v{v} offset:{64 * idx}", tag=str(f))
            p.i(f"ds_read_b64 {vr(b + 2, 2)}, v{v} offset:{64 * idx + 8}", tag=str(f))
        else:
            v = VG_M if which == "M" else VG_C
            p.i(f"ds_read_b128 {vr(b, 4)}, v{v} offset:{64 * (63 - idx)}", tag=str(f))

    def issue(m, maxn):
        n = 0
        while ptr[0] < len(order) and free and n < maxn and len(p.lgq) <= 12:
            f = order[ptr[0]]
            if first[f] > m + LA:
                break
            rd(f)
            ptr[0] += 1
            n += 2 if f[0] == "A" else 1

    aorder = sorted(accs, key=lambda a: firstacc[a])
    for k, a in enumerate(aorder):
        which, n = a
        p.i(f"ds_read_b64 {vr(KVT + 2 * k, 2)}, v{VKV_M if which == 'M' else VKV_C} offset:{512 * (7 - n)}",
            tag=f"kv{k}")

    def init_ops(k):
        a = aorder[k]
        sd = "s63" if a[0] == "M" else "s62"
        r = areg[a]
        d0, d1 = KVT + 2 * k, KVT + 2 * k + 1
        return [f"v_and_b32 v{r}, 0xffff0000, v{d1}", f"v_lshlrev_b32 v{r + 1}, 16, v{d1}",
                f"v_and_b32 v{r + 2}, 0xffff0000, v{d0}", f"v_lshlrev_b32 v{r + 3}, 16, v{d0}",
                f"v_mul_f32 v{r}, {sd}, v{r}", f"v_mul_f32 v{r + 1}, {sd}, v{r + 1}",
                f"v_mul_f32 v{r + 2}, {sd}, v{r + 2}", f"v_mul_f32 v{r + 3}, {sd}, v{r + 3}"]

    issue(-LA + 3, 8)
    p.wait(lg=f"kv{len(aorder) - 1}")
    for o in init_ops(0):
        p.i(o)
    pend = []
    for k in range(1, len(aorder)):
        pend += [(firstacc[aorder[k]], o) for o in init_ops(k)]
    side = {}

    def epi(a):
        which, n = a
        r = areg[a]
        p.wait(vm="st")
        o = KVT + 2 * aorder.index(a)
        p.i(f"v_cvt_pk_bf16_f32 v{o}, v{r}, v{r + 1}")
        p.i(f"v_cvt_pk_bf16_f32 v{o + 1}, v{r + 2}, v{r + 3}")
        p.i(f"v_pk_min_u16 v{o}, v{o}, s66")
        p.i(f"v_pk_min_u16 v{o + 1}, v{o + 1}, s66")
        p.i(f"buffer_store_dwordx2 {vr(o, 2)}, v{VYT}, {sr(SWS, 4)}, {'s64' if which == 'M' else 's65'} offen "
            f"offset:{512 * n} sc1")

    N = len(mfs)
    tail = []
    for a in accs:
        if lastacc[a] + 2 < N:
            side.setdefault(lastacc[a] + 2, []).append(a)
        else:
            tail.append(a)
    for m, (a, fa, fb) in enumerate(mfs):
        while fa not in slot or fb not in slot:
            rd(order[ptr[0]])
            ptr[0] += 1
        while pend and pend[0][0] <= m:
            p.i(pend.pop(0)[1])
        p.wait(lg=str(fa))
        p.wait(lg=str(fb))
        r = areg[a]
        p.i(f"v_mfma_f32_16x16x32_bf16 {vr(r, 4)}, {vr(slot[fa], 4)}, {vr(slot[fb], 4)}, {vr(r, 4)}")
        for f in (fa, fb):
            if last[f] == m:
                free.append(slot[f])
        issue(m, 4)
        for _ in range(4):
            if pend:
                p.i(pend.pop(0)[1])
        for a2 in side.get(m, []):
            epi(a2)
    for a in sorted(tail, key=lambda a: lastacc[a]):
        epi(a)


def conv(p, cfg):
    p.label("K2_CONV")
    p.hist = []
    p.c("---- conv role")
    if cfg.get("noconv"):
        p.wait(lg=0)
        srd(p, SWS, P_WS, WS_SIZE)
        p.i("s_barrier")
        p.i("s_barrier")
        p.probe_end(SWS, WS_PROF + 0x10000)
        p.label("K2_END")
        p.i("s_endpgm")
        return
    if cfg.get("prio", 1):
        p.i(f"s_setprio {cfg.get('prio', 1)}")
    p.i("s_sub_u32 s8, s3, 4")
    p.i("s_lshr_b32 s9, s6, 1")
    p.i("s_mul_i32 s9, s9, 5")
    p.i("s_mul_i32 s10, s7, 80")
    p.i("s_add_u32 s9, s9, s10")
    p.i("s_add_u32 s11, s9, 2")
    p.i("s_and_b32 s12, s6, 1")
    p.i("s_mul_i32 s10, s12, 3")
    p.i("s_add_u32 s9, s9, s10")
    p.i("s_add_u32 s10, s9, 1")
    p.i("v_lshlrev_b32 v13, 4, v0")
    p.i("s_lshl_b32 s13, s8, 10")
    p.i("v_add_u32 v14, s13, v13")
    p.i("s_sub_u32 s14, s13, 8")
    p.i("s_max_i32 s14, s14, 0")
    for c in range(3):
        p.i(f"s_lshl_b32 s{72 + c}, s{9 + c}, 12")
        p.i(f"s_add_u32 s{76 + c}, s{72 + c}, s14")
        p.i(f"s_lshl_b32 s{80 + c}, s{9 + c}, 1")
        p.i(f"s_and_b32 s{80 + c}, s{80 + c}, 0xfffffffc")
    p.wait(lg=0)
    srd(p, SH, P_H, 640 * 4096)
    Q = [16 + 20 * c for c in range(3)]
    for c in range(3):
        p.i(f"buffer_load_dwordx4 {vr(Q[c], 4)}, v14, {sr(SH, 4)}, s{72 + c} offen", tag=f"h{c}")
    srd(p, SWS, P_WS, WS_SIZE)
    for c in range(3):
        p.i(f"s_add_u32 m0, s13, {c * SLOT + URO}")
        p.i(f"s_add_u32 s{72 + c}, s{72 + c}, {WS_UR:#x}")
        p.i(f"buffer_load_dwordx4 v14, {sr(SWS, 4)}, s{72 + c} offen lds", tag="ur")
    for c in range(3):
        p.i(f"s_load_dwordx2 s[{84 + 2 * c}:{85 + 2 * c}], s[{P_H}:{P_H + 1}], s{76 + c}")
        p.i(f"s_load_dword s{60 + c}, s[{P_D}:{P_D + 1}], s{80 + c}")
    srd(p, SX, P_X, X_BYTES)
    p.i("s_min_u32 s14, s8, 2")
    p.i(f"s_mul_i32 s14, s14, {SLOT}")
    p.i("v_bfe_u32 v8, v0, 1, 2")
    p.i(f"v_mul_u32_u24 v8, {CPY}, v8")
    p.i("v_and_b32 v9, 1, v0")
    p.i("v_lshl_add_u32 v8, v9, 4, v8")
    p.i(f"v_add_u32 v9, {URO + 4096}, v13")
    p.i("v_cmp_gt_u32 vcc, 32, v0")
    p.i("v_cndmask_b32 v8, v8, v9, vcc")
    p.i("v_add_u32 v8, s14, v8")
    for n in range(4):
        p.i(f"v_mov_b32 v{76 + n}, 0")
    p.i("ds_write_b128 v8, v[76:79]")
    p.i("v_and_b32 v8, 15, v0")
    p.i("v_lshrrev_b32 v9, 4, v0")
    p.i("v_sub_u32 v10, 15, v8")
    p.i("v_and_b32 v11, 3, v10")
    p.i("v_lshrrev_b32 v10, 2, v10")
    p.i(f"v_mul_u32_u24 v11, {CPY}, v11")
    p.i("v_lshl_add_u32 v11, v9, 4, v11")
    p.i("v_lshlrev_b32 v10, 3, v10")
    p.i("v_sub_u32 v11, v11, v10")
    p.i("s_and_b32 s14, s8, 1")
    p.i(f"s_mul_i32 s14, s14, {SLOT}")
    p.i("s_add_u32 s15, s14, 32")
    p.i(f"v_add_u32 v{VA_M}, s15, v11")
    p.i(f"v_add_u32 v{VA_C}, {2 * SLOT + 32}, v11")
    p.i("v_lshlrev_b32 v10, 5, v8")
    p.i("v_lshlrev_b32 v11, 4, v9")
    p.i("v_sub_u32 v11, v11, v10")
    p.i(f"s_add_u32 s15, s14, {URO + 480}")
    p.i(f"v_add_u32 v{VG_M}, s15, v11")
    p.i(f"v_add_u32 v{VG_C}, {2 * SLOT + URO + 480}, v11")
    p.i(f"v_lshl_add_u32 v{VYT}, v9, 3, v10")
    p.i(f"s_add_u32 s15, s14, {URO + 504}")
    p.i(f"v_sub_u32 v{VKV_M}, s15, v{VYT}")
    p.i(f"v_sub_u32 v{VKV_C}, {2 * SLOT + URO + 504}, v{VYT}")
    p.i("v_add_u32 v15, 32, v14")
    p.wait(lg=0)
    p.i("s_cmp_eq_u32 s8, 0")
    for n in range(6):
        p.i(f"s_cselect_b32 s{84 + n}, 0, s{84 + n}")
    for c in range(3):
        p.i(f"v_mov_b32 v{Q[c] + 8}, s{85 + 2 * c}")
        p.i(f"v_mov_b32 v{Q[c] + 16}, s{84 + 2 * c}")
        p.i(f"s_lshl_b32 s15, s{60 + c}, 16")
        p.i(f"s_and_b32 s{60 + c}, s{60 + c}, 0xffff0000")
        p.i(f"s_bitcmp1_b32 s{9 + c}, 0")
        p.i(f"s_cselect_b32 s{60 + c}, s{60 + c}, s15")
    p.i("s_bitcmp1_b32 s8, 0")
    p.i("s_cselect_b32 s63, s61, s60")
    p.i("s_cselect_b32 s64, s10, s9")
    p.i("s_lshl_b32 s64, s64, 12")
    p.i(f"s_add_u32 s64, s64, {WS_YT:#x}")
    p.i("s_lshl_b32 s65, s11, 12")
    p.i(f"s_add_u32 s65, s65, {WS_YT:#x}")
    p.i("s_mov_b32 s66, 0xfffefffe")
    for c in range(3):
        q, c1, c2, c3, m2 = Q[c], Q[c] + 4, Q[c] + 8, Q[c] + 12, Q[c] + 16
        p.wait(vm=f"h{c}")
        p.i(f"ds_write_b128 v15, {vr(q, 4)} offset:{c * SLOT}")
        p.i(f"v_mov_b32_dpp v{c2}, v{q + 3} wave_shr:1 row_mask:0xf bank_mask:0xf")
        p.i(f"v_mov_b32_dpp v{m2}, v{q + 2} wave_shr:1 row_mask:0xf bank_mask:0xf")
        for m in range(1, 4):
            p.i(f"v_mov_b32 v{c2 + m}, v{q + m - 1}")
        p.i(f"ds_write_b128 v15, {vr(c2, 4)} offset:{c * SLOT + 2 * CPY}")
        for m in range(4):
            p.i(f"v_alignbit_b32 v{c1 + m}, v{q + m}, v{c2 + m}, 16")
        p.i(f"ds_write_b128 v15, {vr(c1, 4)} offset:{c * SLOT + CPY}")
        p.i(f"v_alignbit_b32 v{c3}, v{c2}, v{m2}, 16")
        for m in range(1, 4):
            p.i(f"v_mov_b32 v{c3 + m}, v{c1 + m - 1}")
        p.i(f"ds_write_b128 v15, {vr(c3, 4)} offset:{c * SLOT + 3 * CPY}")
    p.wait(vm=0, lg=0)
    p.probe(1)
    p.i("s_barrier")
    p.probe(2)
    p.i("s_mul_i32 s14, s8, 40")
    p.i("s_and_b32 s15, s14, 0xfffffff0")
    p.i("s_sub_u32 s67, s14, s15")
    p.i("s_mul_i32 s14, s7, 160")
    p.i("s_add_u32 s15, s15, s14")
    p.i("s_mul_i32 s14, s6, 81920")
    p.i("s_add_u32 s15, s15, s14")
    p.i("s_mul_i32 s68, s8, 3072")
    p.i(f"s_add_u32 s68, s68, {XB}")
    for i in range(3):
        p.i(f"v_add_u32 v8, {64 * i}, v0")
        p.i("v_mul_u32_u24 v9, 0x5556, v8")
        p.i("v_lshrrev_b32 v9, 16, v9")
        p.i("v_mul_u32_u24 v10, 3, v9")
        p.i("v_sub_u32 v10, v8, v10")
        p.i("v_mul_u32_u24 v9, 0x500, v9")
        p.i(f"v_lshl_add_u32 v{10 + i}, v10, 4, v9")
        p.i(f"s_add_u32 m0, s68, {1024 * i}")
        p.i(f"buffer_load_dwordx4 v{10 + i}, {sr(SX, 4)}, s15 offen lds", tag="x")
    p.i("s_lshl_b32 s14, s6, 9")
    p.i(f"s_add_u32 s14, s14, {WS_STATS:#x}")
    p.i("v_lshlrev_b32 v8, 3, v0")
    p.i(f"buffer_load_dwordx2 v[250:251], v8, {sr(SWS, 4)}, s14 offen", tag="st")
    p.i("s_cmp_ge_u32 s8, 2")
    p.i("s_cbranch_scc1 K2_CX")
    p.i("s_lshl_b32 s14, s12, 1")
    p.i("s_add_u32 s14, s14, s8")
    for k in range(1, 4):
        p.i(f"s_cmp_eq_u32 s14, {k}")
        p.i(f"s_cbranch_scc1 K2_CY{k}")
    st = p.fork_state()
    for k in range(4):
        p.set_state(st)
        if k:
            p.label(f"K2_CY{k}")
        conv_main(p, cfg, [("M", 5), ("M", 3), ("M", 1), ("M", 0), ("C", 7 - k), ("C", k)], f"Y{k}")
        p.fence()
        p.i("s_branch K2_CP")
    p.set_state(st)
    p.label("K2_CX")
    conv_main(p, cfg, [("M", 7), ("M", 6), ("M", 4), ("M", 2)], "X")
    p.fence()
    p.label("K2_CP")
    p.vmq, p.lgq = [], []
    p.c("y' landing: LDS-DMA, sc1")
    p.probe(3)
    p.i("v_lshrrev_b32 v8, 3, v0")
    p.i("v_lshlrev_b32 v8, 12, v8")
    p.i("v_and_b32 v9, 7, v0")
    p.i("v_lshl_add_u32 v8, v9, 4, v8")
    p.i("s_mul_i32 s14, s7, 80")
    p.i("s_mul_i32 s15, s8, 20")
    p.i("s_add_u32 s14, s14, s15")
    p.i("s_lshl_b32 s14, s14, 12")
    p.i("s_lshl_b32 s15, s6, 7")
    p.i("s_add_u32 s14, s14, s15")
    p.i(f"s_add_u32 s72, s14, {WS_YT:#x}")
    p.i("s_add_u32 s73, s72, 0x8000")
    p.i("s_add_u32 s74, s72, 0x10000")
    p.i("s_mul_i32 s69, s8, 5120")
    p.i(f"s_add_u32 s69, s69, {PB}")

    def poll_issue():
        for i in range(3):
            p.i(f"s_add_u32 m0, s69, {1024 * i}")
            if i == 2:
                p.i("s_mov_b32 exec_hi, 0")
            p.i(f"buffer_load_dwordx4 v8, {sr(SWS, 4)}, s{72 + i} offen sc1 lds", tag="y")
            if i == 2:
                p.i("s_mov_b32 exec_hi, -1")

    poll_issue()
    p.i("v_bfe_u32 v9, v0, 2, 2")
    p.i("v_lshlrev_b32 v9, 7, v9")
    p.i("v_lshrrev_b32 v10, 4, v0")
    p.i("v_lshl_add_u32 v9, v10, 5, v9")
    p.i("v_and_b32 v10, 3, v0")
    p.i("v_lshl_add_u32 v9, v10, 3, v9")
    p.i("v_add_u32 v9, s69, v9")
    p.i("v_add_u32 v12, s69, v13")
    p.i("v_mul_u32_u24 v10, 48, v0")
    p.i("s_add_u32 s68, s68, s67")
    p.i("v_add_u32 v10, s68, v10")
    XR, XF, XN, YR, PO = 16, 32, 56, 80, 96
    for k in range(5):
        p.i(f"ds_read_b64 {vr(XR + 2 * k, 2)}, v10 offset:{8 * k}", tag="xr")
    p.i("v_rcp_f32 v251, v251")
    p.wait(lg=0)
    for d in range(10):
        p.i(f"v_lshlrev_b32 v{XF + 2 * d}, 16, v{XR + d}")
        p.i(f"v_and_b32 v{XF + 2 * d + 1}, 0xffff0000, v{XR + d}")
    for n in range(20):
        p.i(f"v_sub_f32 v{XN + n}, v{XF + n}, v250")
    for n in range(20):
        p.i(f"v_mul_f32 v{XN + n}, v{XN + n}, v251")
    p.i("s_mov_b32 s70, 0x40000")
    p.label("K2_POLL")
    p.wait(vm=0)
    for k in range(5):
        p.i(f"ds_read_b64_tr_b16 {vr(YR + 2 * k, 2)}, v9 offset:{512 * k}", tag="yr")
    p.wait(lg=0)
    p.i(f"v_pk_max_u16 v14, v{YR}, v{YR + 1}")
    p.i(f"v_pk_max_u16 v15, v{YR + 2}, v{YR + 3}")
    for n in range(4, 10):
        p.i(f"v_pk_max_u16 v{14 + (n & 1)}, v{14 + (n & 1)}, v{YR + n}")
    p.i("v_pk_max_u16 v14, v14, v15")
    p.i("v_lshlrev_b32 v15, 16, v14")
    p.i("v_max_u32 v14, v14, v15")
    p.i("v_cmp_le_u32 vcc, 0xffff0000, v14")
    p.i("s_nop 1")
    p.i("s_cbranch_vccz K2_POLL_OK")
    st = p.fork_state()
    p.i("s_sub_u32 s70, s70, 1")
    p.i("s_cbranch_scc1 K2_POLL_OK")
    poll_issue()
    p.i("s_branch K2_POLL")
    p.set_state(st)
    p.label("K2_POLL_OK")
    p.probe(4)
    for k in range(5):
        for e in range(4):
            src = YR + 2 * k + (e >> 1)
            o = PO + 4 * k + e
            if e & 1:
                p.i(f"v_and_b32 v{o}, 0xffff0000, v{src}")
            else:
                p.i(f"v_lshlrev_b32 v{o}, 16, v{src}")
        for e in range(4):
            o = PO + 4 * k + e
            p.i(f"v_fma_f32 v{o}, v{o}, v{XN + 4 * k + e}, v{XF + 4 * k + e}")
        p.i(f"ds_write_b128 v12, {vr(PO + 4 * k, 4)} offset:{1024 * k}")
    p.wait(lg=0)
    p.probe(5)
    p.i("s_barrier")
    p.probe_end(SWS, WS_PROF + 0x10000)
    p.label("K2_END")
    p.i("s_endpgm")


def gen_k2(cfg):
    p = Prog("k2")
    p.label("k2_kernel")
    p.i("s_cmp_ge_u32 s2, 256")
    p.i("s_cbranch_scc1 K2_END")
    p.prof = cfg.get("prof", False)
    p.probe_init()
    p.probe(0)
    load_kernargs(p)
    p.i("v_lshrrev_b32 v1, 6, v0")
    p.i("v_and_b32 v0, 63, v0")
    p.i("v_readfirstlane_b32 s3, v1")
    p.i("s_and_b32 s4, s2, 7")
    p.i("s_lshr_b32 s5, s2, 3")
    p.i("s_lshr_b32 s6, s4, 1")
    p.i("s_lshl_b32 s6, s6, 3")
    p.i("s_and_b32 s7, s5, 7")
    p.i("s_add_u32 s6, s6, s7")
    p.i("s_and_b32 s7, s4, 1")
    p.i("s_lshl_b32 s7, s7, 2")
    p.i("s_lshr_b32 s8, s5, 3")
    p.i("s_add_u32 s7, s7, s8")
    p.i("s_cmp_ge_u32 s3, 4")
    p.i("s_cbranch_scc1 K2_CONV")
    st = p.fork_state()
    gemm2(p, cfg)
    p.set_state(st)
    conv(p, cfg)
    return p, LDS2
```

```python
import sys, json, os
sys.path.insert(0, os.path.dirname(__file__))
from k1 import gen_k1
import f1
try:
    from k2 import gen_k2
except ImportError:
    gen_k2 = None

NAME = "parallel_sum__ssm_conv_h3__glu_gated_geglu__prompt"

def kd(name, vgpr, sgpr):
    return f""".p2align 6
.amdhsa_kernel {name}
  .amdhsa_next_free_vgpr {vgpr}
  .amdhsa_next_free_sgpr {sgpr}
  .amdhsa_accum_offset {vgpr}
  .amdhsa_group_segment_fixed_size 0
  .amdhsa_kernarg_size 104
  .amdhsa_user_sgpr_count 2
  .amdhsa_user_sgpr_kernarg_segment_ptr 1
  .amdhsa_system_sgpr_workgroup_id_x 1
.end_amdhsa_kernel
"""

def build(cfg):
    k1 = f1.gen_k1(cfg["f1"]) if "f1" in cfg else gen_k1(cfg.get("k1", {}))
    ks = [("k1_kernel", k1, 163840)]
    if gen_k2 is not None and not cfg.get("only_k1"):
        k2, lds2 = gen_k2(cfg.get("k2", {}))
        ks.append(("k2_kernel", k2, lds2))
    out = ["; generated by gen/gen.py: two launches (GEMM1+GeGLU+pre-pass, then GEMM2+long conv+combine)"]
    for idx in cfg.get("seq", range(len(ks))):
        n, _, lds = ks[idx]
        out.append(f"; @launch kernel={n} grid=(256,1,1) block=(512,1,1) lds={lds}")
    out.append('.amdgcn_target "amdgcn-amd-amdhsa--gfx950"')
    out.append(".text")
    for n, p, _ in ks:
        out.append(f".globl {n}\n.p2align 8\n.type {n},@function")
        out.append(p.text())
    out.append('.section .rodata,"a"')
    for n, _, _ in ks:
        out.append(kd(n, 256, 102))
    return "\n".join(out)

if __name__ == "__main__":
    cfg = json.loads(sys.argv[2]) if len(sys.argv) > 2 else {}
    path = sys.argv[1] if len(sys.argv) > 1 else f"cdna_kernels/{NAME}.s"
    open(path, "w").write(build(cfg))
    print("wrote", path, os.path.getsize(path))
```
